```python
import torch

def _softmax(x, axis=-1):
    return torch.softmax(x, dim=axis)
def _gelu(x):
    return torch.nn.functional.gelu(x, approximate="tanh")
def _silu(x):
    return torch.nn.functional.silu(x)
def _sigmoid(x):
    return torch.sigmoid(x)
def _layernorm(x, axis=-1, eps=1e-5):
    m = x.mean(dim=axis, keepdim=True)
    v = x.var(dim=axis, keepdim=True, unbiased=False)
    return (x - m) / torch.sqrt(v + eps)
def _scatter_add(tgt, idx, src, axis=0):
    return tgt.clone().index_add_(axis, idx, src)
def _segment_sum(src, seg, n):
    out = torch.zeros((n,) + src.shape[1:], dtype=src.dtype)
    return out.index_add_(0, seg, src)
def _pad(x, pw):
    flat = tuple(v for pair in reversed(pw) for v in pair)
    return torch.nn.functional.pad(x, flat)

kernel_name = 'gated_mix__linear_attn_block__glu_gated_swiglu__prompt'

def setup_inputs():

    _w = (lambda a: (lambda t: t.to(torch.bfloat16) if t.is_floating_point() else t)(torch.as_tensor(a)))
    def _A_setup():
        B, S, D = 1, 2048, 512
        return {
            "x": _w((lambda *s: torch.randn(*s, dtype=torch.bfloat16) * 0.05)(B, S, D)),
            "wqkv": _w((lambda *s: torch.randn(*s, dtype=torch.bfloat16) * 0.8)(D, 3 * D)),
            "wo": _w((lambda *s: torch.randn(*s, dtype=torch.bfloat16) * 0.05)(D, D)),
        }
    _A_in = _A_setup()

    def _B_setup():
        B, S, D, F = 1, 2048, 512, 1376
        return {
            "x": _w((lambda *s: torch.randn(*s, dtype=torch.bfloat16) * 0.05)(B, S, D)),
            "w1": _w((lambda *s: torch.randn(*s, dtype=torch.bfloat16) * 1.6)(D, F) * (2.0 / D) ** 0.5),
            "w3": _w((lambda *s: torch.randn(*s, dtype=torch.bfloat16) * 1.6)(D, F) * (2.0 / D) ** 0.5),
            "w2": _w((lambda *s: torch.randn(*s, dtype=torch.bfloat16) * 1.6)(F, D) * (2.0 / F) ** 0.5),
        }
    _B_in = _B_setup()

    return {
        "A_x": _A_in["x"],
        "A_wqkv": _A_in["wqkv"],
        "A_wo": _A_in["wo"],
        "B_x": _B_in["x"],
        "B_w1": _B_in["w1"],
        "B_w3": _B_in["w3"],
        "B_w2": _B_in["w2"],
        "gate_w": _w((lambda *s: torch.randn(*s, dtype=torch.bfloat16) * 0.05)(512) * 16.0),
    }

def reference(A_x, A_wqkv, A_wo, B_x, B_w1, B_w3, B_w2, gate_w):
    def _A_ref(x, wqkv, wo):
        B, S, D = x.shape
        H = 32; Dh = D // H
        qkv = (lambda x, *d: x.permute(*d))((x @ wqkv).reshape(B, S, 3, H, Dh), 2, 0, 3, 1, 4)
        q, k, v = qkv[0], qkv[1], qkv[2]
        phi = lambda t: torch.where(t > 0, t + 1, torch.exp(t)) + 1e-6
        pq, pk = phi(q), phi(k)
        kv = torch.einsum("bhsd,bhse->bhde", pk, v)
        z = torch.einsum("bhsd->bhd", pk)
        num = torch.einsum("bhqd,bhde->bhqe", pq, kv)
        den = torch.einsum("bhqd,bhd->bhq", pq, z)[..., None] + 1e-6
        o = num / den
        return (lambda x, *d: x.permute(*d))(o, 0, 2, 1, 3).reshape(B, S, D) @ wo

    def _B_ref(x, w1, w3, w2):
        gate = torch.einsum("bsd,df->bsf", x, w1)
        up = torch.einsum("bsd,df->bsf", x, w3)
        h = _silu(gate) * up
        out = torch.einsum("bsf,fd->bsd", h, w2)
        return out

    x = A_x
    g = _sigmoid((x * gate_w).sum(-1, keepdims=True))
    a = _A_ref(x, A_wqkv, A_wo)
    b = _B_ref(x, B_w1, B_w3, B_w2)
    return g * a + (1 - g) * b
```

```python
NAME = "gated_mix__linear_attn_block__glu_gated_swiglu__prompt"
class Asm:
    def __init__(self):
        self.L = []
    def __call__(self, s):
        for l in s.split("\n"):
            self.L.append(l)
    def text(self):
        return "\n".join(self.L) + "\n"
def header(e, launches):
    for l in launches:
        e(l)
    e('.amdgcn_target "amdgcn-amd-amdhsa--gfx950"')
    e(".text")
def kernel_begin(e, name):
    e(f".globl {name}")
    e(".p2align 8")
    e(f".type {name},@function")
    e(f"{name}:")
def descriptors(e, kernels):
    e('.section .rodata,"a"')
    for name, nv, acc, ns in kernels:
        e(".p2align 6")
        e(f".amdhsa_kernel {name}")
        e(f"  .amdhsa_next_free_vgpr {nv}")
        e(f"  .amdhsa_next_free_sgpr {ns}")
        e(f"  .amdhsa_accum_offset {acc}")
        e("  .amdhsa_group_segment_fixed_size 0")
        e("  .amdhsa_kernarg_size 88")
        e("  .amdhsa_user_sgpr_count 2")
        e("  .amdhsa_user_sgpr_kernarg_segment_ptr 1")
        e("  .amdhsa_system_sgpr_workgroup_id_x 1")
        e(".end_amdhsa_kernel")
def srd(e, d, base, nbytes):
    e(f"s_mov_b32 s{d}, s{base}")
    e(f"s_mov_b32 s{d+1}, s{base+1}")
    e(f"s_mov_b32 s{d+2}, {nbytes}")
    e(f"s_mov_b32 s{d+3}, 0x20000")
```

```python
import re
TRANS = ("v_exp_f32", "v_log_f32", "v_rcp_f32", "v_rsq_f32", "v_sqrt_f32", "v_sin_f32", "v_cos_f32", "v_rcp_iflag_f32")
def regs(tok):
    tok = tok.strip()
    tok = tok.lstrip("-")
    if tok.startswith("abs(") : tok = tok[4:-1]
    if tok.startswith("|"): tok = tok.strip("|")
    m = re.fullmatch(r"([vas])(\d+)", tok)
    if m: return {(m.group(1), int(m.group(2)))}
    m = re.fullmatch(r"([vas])\[(\d+):(\d+)\]", tok)
    if m: return {(m.group(1), i) for i in range(int(m.group(2)), int(m.group(3)) + 1)}
    if tok == "vcc": return {("s", "vcc")}
    if tok in ("vcc_lo", "vcc_hi"): return {("s", "vcc")}
    if tok in ("exec", "exec_lo", "exec_hi"): return {("s", "exec")}
    if tok == "m0": return {("s", "m0")}
    return set()
class I:
    pass
def parse(line):
    s = line.split(";")[0].split("//")[0].strip()
    i = I(); i.text = line; i.kind = "none"; i.d = set(); i.u = set(); i.ws = 0; i.mn = ""
    if not s or s.startswith("."): return i
    if s.endswith(":"):
        i.kind = "label"; i.label = s[:-1]; return i
    p = s.split(None, 1); mn = p[0]; i.mn = mn
    rest = p[1] if len(p) > 1 else ""
    ops = [o.strip() for o in rest.split(",")] if rest else []
    mods = ""
    if ops:
        m = re.search(r"\s(op_sel|op_sel_hi|neg_lo|neg_hi|offset|offset0|offen|idxen|sc0|sc1|nt|lds|clamp|mul:|div:|row_|quad_perm|bitop3|cbsz|glc|bank_mask|bound_ctrl)", " " + rest)
        if m:
            mods = rest[m.start():]; rest = rest[:m.start()]
            ops = [o.strip() for o in rest.split(",") if o.strip()]
    i.mods = mods; i.ops = ops; i.ws = 1
    base = re.sub(r"_e(32|64)$|_dpp$|_sdwa$", "", mn)
    R = [regs(o) for o in ops]
    U = lambda l: set().union(*l) if l else set()
    if mn == "s_nop": i.kind = "nop"; i.ws = int(ops[0], 0) + 1
    elif mn.startswith("v_mfma"):
        i.kind = "mfma"; i.d = R[0]; i.a = R[1] | R[2]; i.c = R[3]; i.u = i.a | i.c
        i.passes = 8 if "32x32" in mn else 4
    elif mn.startswith("v_"):
        i.kind = "valu"; i.trans = base in TRANS
        i.dpp = ("row_" in mods or "quad_perm" in mods)
        if base.startswith("v_cmp"): i.d = R[0]; i.u = U(R[1:])
        elif base in ("v_readfirstlane_b32", "v_readlane_b32"): i.d = R[0]; i.u = U(R[1:])
        elif base.startswith("v_permlane") and "swap" in base: i.d = R[0] | R[1]; i.u = R[0] | R[1]
        elif base in ("v_add_co_u32", "v_sub_co_u32", "v_addc_co_u32", "v_subb_co_u32", "v_mad_u64_u32"): i.d = R[0] | R[1]; i.u = U(R[2:])
        elif base in ("v_fmac_f32", "v_dot2c_f32_bf16", "v_writelane_b32", "v_pk_fmac_f16"): i.d = R[0]; i.u = U(R)
        else: i.d = R[0]; i.u = U(R[1:])
        if i.dpp: i.u |= R[0]
    elif mn.startswith("buffer_") or mn.startswith("global_"):
        i.kind = "vmem"; i.lds = (" lds" in " " + mods) or "_lds_" in mn
        i.store = "store" in mn or "atomic" in mn
        i.wide = i.store and ("x4" in mn or "x3" in mn)
        if mn in ("buffer_wbl2", "buffer_inv"): pass
        elif i.lds: i.u = U(R) | {("s", "m0")}
        elif i.store:
            i.u = U(R)
            i.data = R[0] if mn.startswith("buffer_") else R[1]
            if "atomic" in mn and "sc0" in mods: i.d = R[0]
        else: i.d = R[0]; i.u = U(R[1:])
    elif mn.startswith("ds_"):
        i.kind = "ds"
        if "read" in mn or "permute" in mn or "swizzle" in mn or "_rtn" in mn: i.d = R[0]; i.u = U(R[1:])
        else: i.u = U(R)
    elif mn.startswith("s_load") or mn.startswith("s_buffer_load") or mn.startswith("s_memtime") or mn.startswith("s_memrealtime") or mn.startswith("s_atomic"):
        i.kind = "smem"; i.d = R[0]; i.u = U(R[1:])
    elif mn.startswith("s_cbranch") or mn == "s_branch":
        i.kind = "branch"; i.target = ops[0]
    elif mn in ("s_waitcnt", "s_barrier", "s_endpgm", "s_sleep", "s_setprio"):
        i.kind = "ctl"
    elif mn.startswith("s_cmp") or mn.startswith("s_bitcmp"):
        i.kind = "salu"; i.u = U(R)
    elif mn.startswith("s_"):
        i.kind = "salu"; i.d = R[0] if R else set(); i.u = U(R[1:])
        if "saveexec" in mn: i.d = i.d | {("s", "exec")}
    else:
        raise ValueError("unparsed: " + line)
    return i
isv = lambda S: {r for r in S if r[0] in "va"}
iss = lambda S: {r for r in S if r[0] == "s"}
def need(p, c):
    n = 0
    if p.kind == "valu":
        dv = isv(p.d); dsg = iss(p.d)
        if c.kind == "mfma" and dv & c.u: n = max(n, 2)
        if c.kind == "valu":
            if p.trans and dv & c.u: n = max(n, 1)
            if dv & c.u and c.mn.startswith(("v_readfirstlane", "v_readlane")): n = max(n, 1)
            if dv & c.u and (c.mn.startswith("v_permlane") or c.dpp): n = max(n, 2)
            if dsg & c.u: n = max(n, 4 if c.mn.startswith(("v_readlane", "v_writelane")) else 2)
        if c.kind == "vmem" and dsg & c.u: n = max(n, 5)
        if c.kind in ("salu", "smem") and dsg & c.u: n = max(n, 1)
        if p.trans and c.kind in ("vmem", "ds") and dv & c.u: n = max(n, 1)
    if p.kind == "mfma":
        big = 12 if p.passes == 8 else 8
        if c.kind == "mfma":
            if p.d & c.a: n = max(n, big)
            if p.d & c.c and not (p.d == c.c and p.passes == c.passes): n = max(n, big - 2)
            if p.d & c.d and not (p.d == c.c and p.passes == c.passes): n = max(n, big - 2)
        if c.kind in ("valu", "vmem", "ds") and p.d & (c.u | c.d): n = max(n, big)
        if c.kind == "valu" and p.c & c.d: n = max(n, 7 if p.passes == 8 else 3)
    if p.kind == "salu" and ("s", "m0") in p.d and c.kind == "vmem" and c.lds: n = max(n, 1)
    if p.kind == "vmem" and p.wide and p.data & c.d: n = max(n, 2 if c.kind in ("valu", "mfma") else 1)
    return n
WIN = 14
def missing(hist, c):
    dist = 0; worst = 0
    for p in reversed(hist):
        if dist >= WIN: break
        k = need(p, c) - dist
        if k > worst: worst = k
        dist += p.ws
    return worst
def fix(lines, verbose=False):
    out = []; hist = []; nins = 0
    for l in lines:
        c = parse(l)
        if c.ws:
            k = missing(hist, c)
            if k > 0:
                nop = parse(f"s_nop {k-1}")
                out.append(nop); hist.append(nop); nins += 1
                if verbose: print("inserted", nop.text, "before", l)
            hist.append(c)
            if c.mn in ("s_branch", "s_endpgm"): hist = []
            hist = hist[-WIN - 2:]
        out.append(c)
    lab = {c.label: k for k, c in enumerate(out) if c.kind == "label"}
    for k, c in enumerate(out):
        if c.kind == "branch":
            h = []
            for p in reversed(out[:k + 1]):
                if p is not c and p.mn in ("s_branch", "s_endpgm"): break
                if p.ws: h.insert(0, p)
                if len(h) > WIN + 2: break
            n = 0
            for q in out[lab[c.target]:]:
                if not q.ws: continue
                m = missing(h, q)
                if m > 0: raise ValueError(f"hazard across branch '{c.text}': {q.text} lacks {m} wait states")
                h.append(q); n += q.ws
                if n > WIN or q.mn in ("s_branch", "s_endpgm"): break
    return [c.text for c in out], nins
```

```python
import sys
from asmlib import *
import hazard
OPT = dict(a.split("=") for a in sys.argv[1:] if "=" in a)
ROT1 = int(OPT.get("rot1", 4))
ROT2 = int(OPT.get("rot2", 2))
STAMP = int(OPT.get("stamp", 0))
ACT_BYTES = 64 * 118 * 1024
G_OFF = 0x780000; KV_OFF = 0x790000; ST_OFF = 0x800000
HUGE = 0x7f000000
SLOT = 49408; WOFF = 24576; GATE_LDS = 3 * SLOT
LOG2E = "0x3fb8aa3b"; NLOG2E = "0xbfb8aa3b"; EPS = "0x358637bd"
e = Asm()
header(e, ["; @launch kernel=k0_kernel grid=(9,1,1) block=(256,1,1) lds=0",
           f"; @launch kernel=k1_kernel grid=(256,1,1) block=(512,1,1) lds={GATE_LDS+1024}",
           f"; @launch kernel=k2_kernel grid=(256,1,1) block=(256,1,1) lds={49152+69632}"])
def vr(b, n): return f"v[{b}:{b+n-1}]"
def stamp(idx, vreg):
    if STAMP:
        e("s_memtime s[98:99]"); e("s_waitcnt lgkmcnt(0)"); e(f"v_writelane_b32 v{vreg}, s98, {idx}")
def rstamp(idx, vreg):
    if STAMP:
        e("s_memrealtime s[98:99]"); e("s_waitcnt lgkmcnt(0)"); e(f"v_writelane_b32 v{vreg}, s98, {idx}")
def stamp_store(vreg, kern, srdws, vlane, swave):
    if STAMP:
        e(f"s_lshl_b32 s97, s2, 3"); e(f"s_add_u32 s97, s97, {swave}"); e("s_lshl_b32 s97, s97, 8")
        e(f"s_add_u32 s97, s97, {ST_OFF + kern * 0x80000}")
        e(f"v_lshlrev_b32 v1, 2, v{vlane}")
        e(f"buffer_store_dword v{vreg}, v1, s[{srdws}:{srdws+3}], s97 offen")

kernel_begin(e, "k0_kernel")
e("s_load_dwordx2 s[4:5], s[0:1], 80")
e("s_lshl_b32 s3, s2, 12")
e("v_lshl_add_u32 v1, v0, 4, s3")
for i in range(4): e(f"v_mov_b32 v{4+i}, 0")
e("s_waitcnt lgkmcnt(0)")
e(f"s_add_u32 s8, s4, {KV_OFF}"); e("s_addc_u32 s9, s5, 0"); e("s_mov_b32 s10, 34816"); e("s_mov_b32 s11, 0x20000")
e("buffer_store_dwordx4 v[4:7], v1, s[8:11], 0 offen")
e("s_endpgm")

kernel_begin(e, "k1_kernel")
e("s_load_dwordx4 s[4:7], s[0:1], 0")
e("s_load_dwordx4 s[8:11], s[0:1], 32")
e("s_load_dwordx2 s[12:13], s[0:1], 56")
e("s_load_dwordx2 s[14:15], s[0:1], 80")
e("s_cmp_ge_u32 s2, 256"); e("s_cbranch_scc1 K1_end")
e("s_and_b32 s16, s2, 7"); e("s_lshr_b32 s17, s2, 3"); e("s_lshl_b32 s16, s16, 5"); e("s_add_u32 s16, s16, s17")
e("s_cmp_ge_u32 s16, 253"); e("s_cbranch_scc1 K1_end")
e("v_lshrrev_b32 v1, 6, v0"); e("v_and_b32 v2, 63, v0")
e("s_mov_b32 s17, 0"); e("s_mov_b32 s18, 6"); e("s_mov_b32 s19, 0"); e("s_mov_b32 s20, 0")
for lim, d, c0, r0 in [(78, 5, 13, 0), (128, 5, 0, 6), (193, 6, 13, 5)]:
    e(f"s_cmp_ge_u32 s16, {lim}")
    e(f"s_cselect_b32 s17, {lim}, s17"); e(f"s_cselect_b32 s18, {d}, s18"); e(f"s_cselect_b32 s19, {c0}, s19"); e(f"s_cselect_b32 s20, {r0}, s20")
e("v_readfirstlane_b32 s24, v1")
e("s_sub_u32 s16, s16, s17")
e("s_cmp_eq_u32 s18, 6"); e("s_movk_i32 s21, 205"); e("s_cselect_b32 s21, 171, s21")
e("s_mul_i32 s21, s21, s16"); e("s_lshr_b32 s21, s21, 10")
e("s_mul_i32 s22, s21, s18"); e("s_sub_u32 s22, s16, s22")
e("s_add_u32 s25, s20, s22")
e("s_add_u32 s26, s19, s21")
e("s_mul_i32 s27, s26, 171"); e("s_lshr_b32 s27, s27, 9")
e("s_mul_i32 s16, s27, 3"); e("s_sub_u32 s28, s26, s16")
e("s_sub_u32 s29, s26, s27"); e("s_sub_u32 s29, s29, 1")
e("s_add_u32 s30, s25, s26"); e(f"s_and_b32 s30, s30, {ROT1-1}"); e(f"s_mul_i32 s30, s30, {8//ROT1}")
if STAMP: e("v_mov_b32 v3, 0")
e("s_cmp_ge_u32 s24, 4"); e("s_cbranch_scc0 K1_cons")
e("s_sub_u32 s31, s24, 4")
e("v_lshrrev_b32 v4, 3, v2"); e("v_and_b32 v5, 7, v2"); e("v_lshrrev_b32 v6, 4, v2")
e("v_xor_b32 v6, v5, v6")
e("s_mul_i32 s16, s25, 192"); e("s_mul_i32 s17, s31, 48"); e("s_add_u32 s16, s16, s17"); e("s_lshl_b32 s16, s16, 10")
e("v_lshlrev_b32 v7, 10, v4"); e("v_add_u32 v7, s16, v7")
e("v_lshl_add_u32 v10, v6, 4, v7")
e("v_xor_b32 v11, 64, v10"); e("v_add_u32 v11, 8192, v11")
for i in range(2, 6): e(f"v_add_u32 v{10+i}, {8192*(i-(i&1))}, v{10+(i&1)}")
e("s_cmp_eq_u32 s28, 0"); e("s_cbranch_scc1 K1_ld_qkv")
e("s_and_b32 s16, s31, 1"); e("s_mul_i32 s16, s16, 384")
e("s_mul_i32 s17, s29, 12"); e("s_movk_i32 s18, 2752"); e(f"v_mov_b32 v9, {HUGE}")
for i in range(6):
    e(f"s_add_u32 s19, s16, {64*i}")
    e("v_add_u32 v6, s19, v2")
    e("v_mul_u32_u24 v7, 5462, v6"); e("v_lshrrev_b32 v7, 16, v7")
    e("v_mul_u32_u24 v8, 12, v7"); e("v_sub_u32 v8, v6, v8"); e("v_add_u32 v8, s17, v8")
    e("v_cmp_gt_u32 vcc, 172, v8")
    e("v_mul_u32_u24 v7, s18, v7"); e("v_lshl_add_u32 v7, v8, 4, v7")
    e(f"v_cndmask_b32 v{16+i}, v9, v7, vcc")
e("s_mov_b32 s33, %d" % (64 * 2752))
e("s_lshr_b32 s16, s31, 1"); e("s_lshl_b32 s16, s16, 5")
e("s_waitcnt lgkmcnt(0)")
e("s_cmp_ge_u32 s31, 2"); e("s_cselect_b32 s44, s10, s8"); e("s_cselect_b32 s45, s11, s9"); e("s_mov_b32 s46, %d" % (512 * 2752))
e("s_branch K1_ld_go")
e("K1_ld_qkv:")
e("v_lshrrev_b32 v6, 4, v2"); e("v_and_b32 v6, 1, v6"); e("v_lshlrev_b32 v6, 2, v6"); e("v_xor_b32 v6, v5, v6")
e("v_mul_u32_u24 v7, 3072, v4"); e("v_lshl_add_u32 v7, v6, 4, v7")
e("s_lshl_b32 s17, s27, 7")
for i in range(6):
    e(f"s_mul_i32 s16, s31, 6"); e(f"s_add_u32 s16, s16, {i}")
    e("s_lshr_b32 s18, s16, 3"); e("s_lshl_b32 s18, s18, 10"); e("s_and_b32 s16, s16, 7"); e("s_mul_i32 s16, s16, %d" % (8 * 3072))
    e("s_add_u32 s16, s16, s18"); e("s_add_u32 s16, s16, s17")
    e(f"v_add_u32 v{16+i}, s16, v7")
e("s_mov_b32 s33, %d" % (64 * 3072))
e("s_mov_b32 s16, 0")
e("s_waitcnt lgkmcnt(0)")
e("s_mov_b32 s44, s6"); e("s_mov_b32 s45, s7"); e("s_mov_b32 s46, %d" % (512 * 3072))
e("K1_ld_go:")
e("s_mov_b32 s47, 0x20000")
srd(e, 40, 4, 0x200000)
srd(e, 52, 12, 1024)
e("s_mul_i32 s34, s31, 6144")
e(f"s_add_u32 s35, s34, {WOFF}"); e("s_add_u32 s35, s35, s16")
stamp(0, 3)
e("v_lshlrev_b32 v8, 4, v2"); e(f"s_mov_b32 m0, {GATE_LDS}")
e("buffer_load_dwordx4 v8, s[52:55], 0 offen lds")
def issue1(st):
    e(f"s_add_u32 s36, s30, {st}"); e("s_and_b32 s36, s36, 7")
    e("s_mul_i32 s37, s36, s33"); e("s_lshl_b32 s36, s36, 7")
    for i in range(6):
        e(f"s_add_u32 m0, s34, {(st % 3) * SLOT + i * 1024}")
        e(f"buffer_load_dwordx4 v{10+i}, s[40:43], s36 offen lds")
        e(f"s_add_u32 m0, s35, {(st % 3) * SLOT + i * 1024}")
        e(f"buffer_load_dwordx4 v{16+i}, s[44:47], s37 offen lds")
for st in range(3): issue1(st)
e("s_waitcnt vmcnt(24)"); e("s_barrier")
for s in range(8):
    if s + 1 <= 7: e(f"s_waitcnt vmcnt({12 * (min(s + 2, 7) - (s + 1))})")
    stamp(1 + s, 3)
    e("s_barrier")
    if s + 3 <= 7: issue1(s + 3)
if STAMP:
    srd(e, 48, 14, 0x10000000); stamp_store(3, 0, 48, 2, "s24")
e("s_endpgm")

XF = lambda b, rt: 16 + 12 * b + 4 * rt
WF = lambda b, ct: 40 + 12 * b + 4 * ct
ACC = lambda rt, ct: 112 + 16 * (3 * rt + ct)
e("K1_cons:")
rstamp(30, 3); stamp(0, 3)
e("s_lshr_b32 s31, s24, 1"); e("s_and_b32 s32, s24, 1")
e("v_and_b32 v9, 31, v2"); e("v_lshrrev_b32 v15, 5, v2")
e("s_mul_i32 s16, s31, %d" % (96 * 128))
e("v_lshlrev_b32 v64, 7, v9"); e("v_add_u32 v64, s16, v64")
e("v_bfe_u32 v65, v2, 1, 3"); e("v_xor_b32 v65, v65, v15")
for ks in range(4):
    e(f"v_xor_b32 v66, {2*ks}, v65"); e(f"v_lshl_add_u32 v{4+ks}, v66, 4, v64")
e("v_bfe_u32 v64, v2, 4, 1"); e("v_bfe_u32 v65, v2, 2, 2")
e("v_and_b32 v66, 1, v2"); e("v_bfe_u32 v67, v2, 1, 1"); e("v_lshl_or_b32 v66, v66, 1, v67")
e("v_lshl_add_u32 v67, v15, 3, v65")
for i in range(144): e(f"v_mov_b32 v{112+i}, 0")
e("s_waitcnt lgkmcnt(0)")
srd(e, 48, 14, 0x10000000)
srd(e, 56, 14, ACT_BYTES)
e("s_mul_i32 s16, s25, 6"); e("s_mul_i32 s17, s31, 3"); e("s_add_u32 s33, s16, s17")
e("s_cmp_eq_u32 s28, 0"); e("s_cbranch_scc1 K1_qkv")
e("s_cmp_eq_u32 s29, 14"); e("s_cselect_b32 s16, s32, 0"); e("s_cmp_eq_u32 s16, 1"); e("s_cbranch_scc1 K1_gate")

def mainloop(typ):
    rowb = 192 if typ == "w13" else 128
    ctb = 32 if typ == "w13" else 8192
    def reads(b, ks):
        R = []
        X = [f"ds_read_b128 {vr(XF(b, rt), 4)}, v{10+ks} offset:{rt*4096}" for rt in range(3)]
        if typ == "gate":
            return [f"ds_read_b128 {vr(WF(b, 0), 4)}, v14 offset:{ks*32}"] + X
        W = [[f"ds_read_b64_tr_b16 {vr(WF(b, ct) + 2*i, 2)}, v14 offset:{(16*ks + 4*i) * rowb + ct * ctb}" for i in range(2)] for ct in range(3)]
        return W[0] + X + W[1] + W[2]
    def mfmas(b):
        M = []
        for ct in range(1 if typ == "gate" else 3):
            for rt in range(3):
                A, B = vr(WF(b, ct), 4), vr(XF(b, rt), 4)
                if typ == "qkv" and ct > 0: A, B = B, A
                M.append(f"v_mfma_f32_32x32x16_bf16 {vr(ACC(rt, ct), 16)}, {A}, {B}, {vr(ACC(rt, ct), 16)}")
        return M
    for ks in range(4): e(f"v_mov_b32 v{10+ks}, v{4+ks}")
    if typ == "gate":
        e("s_mov_b32 s36, s30"); e("s_lshl_b32 s37, s36, 7"); e("v_add_u32 v14, s37, v8")
    else:
        e("v_mov_b32 v14, v8")
    e("s_mov_b32 s34, 0"); e("s_mov_b32 s35, 0")
    e("s_barrier")
    stamp(1, 3)
    for r in reads(0, 0): e(r)
    e(".p2align 3")
    e(f"K1_loop_{typ}:")
    for ks in range(4):
        b = ks & 1
        R = reads(1 - b, (ks + 1) & 3); M = mfmas(b); X = []
        e("s_waitcnt lgkmcnt(0)")
        if ks == 3:
            e("s_barrier")
            e("v_add_u32 v10, s34, v4")
            e("v_add_u32 v14, s37, v8" if typ == "gate" else "v_add_u32 v14, s34, v8")
            X = [f"v_add_u32_e64 v{10+k}, s34, v{4+k}" for k in range(1, 4)]
        else:
            e("s_nop 0")
        if ks == 2:
            X = [f"s_add_u32 s34, s34, {SLOT}", f"s_cmp_eq_u32 s34, {3*SLOT}", "s_cselect_b32 s34, 0, s34\ns_add_u32 s35, s35, 1"]
            if typ == "gate": X[2] += "\ns_add_u32 s36, s36, 1\ns_and_b32 s36, s36, 7\ns_lshl_b32 s37, s36, 7\ns_nop 0"
        for k, m in enumerate(M):
            e(m)
            for _ in range(2):
                if R: e(R.pop(0))
            if not R and X and (k >= 5 or typ == "gate"): e(X.pop(0))
        for x in X: e(x)
    e("s_cmp_lt_u32 s35, 8"); e(f"s_cbranch_scc1 K1_loop_{typ}")
    stamp(2, 3)

def finish():
    if STAMP:
        stamp(3, 3); e("s_waitcnt vmcnt(0)"); stamp(4, 3); rstamp(31, 3); stamp_store(3, 0, 48, 2, "s24")
    e("s_endpgm")

e("s_mul_i32 s16, s32, 96"); e(f"s_add_u32 s16, s16, {WOFF}")
e("v_mul_u32_u24 v8, %d, v64" % (12288 + 32)); e("v_mul_u32_u24 v67, 192, v67"); e("v_add3_u32 v8, v8, v67, s16"); e("v_lshl_add_u32 v8, v66, 3, v8")
mainloop("w13")
e("v_lshlrev_b32 v9, 4, v2")
e("s_mul_i32 s16, s29, 6"); e("s_mul_i32 s17, s32, 3"); e("s_add_u32 s16, s16, s17")
e("s_mul_i32 s17, s33, 118"); e("s_add_u32 s17, s17, s16"); e("s_lshl_b32 s17, s17, 10")
e(f"s_mov_b32 s60, {NLOG2E}"); e(f"s_mov_b32 s61, {NLOG2E}")
n = 0
for ct in range(3):
    e(f"s_add_u32 s18, s17, {ct*1024}"); e(f"s_cmp_lt_u32 s16, {86-ct}"); e(f"s_cselect_b32 s18, s18, {HUGE}")
    for rt in range(3):
        a = ACC(rt, ct); T = 64 + 8 * (n & 1); O = 80 + 4 * (n & 3); n += 1
        for j in range(0, 8, 2): e(f"v_pk_mul_f32 {vr(T+j,2)}, {vr(a+j,2)}, s[60:61]")
        for j in range(8): e(f"v_exp_f32 v{T+j}, v{T+j}")
        for j in range(0, 8, 2): e(f"v_pk_mul_f32 {vr(a+j,2)}, {vr(a+j,2)}, {vr(a+8+j,2)}")
        for j in range(0, 8, 2): e(f"v_pk_add_f32 {vr(T+j,2)}, {vr(T+j,2)}, 1.0 op_sel_hi:[1,0]")
        for j in range(8): e(f"v_rcp_f32 v{T+j}, v{T+j}")
        e(f"s_add_u32 s19, s18, {rt*118*1024}")
        for j in range(0, 8, 2): e(f"v_pk_mul_f32 {vr(a+j,2)}, {vr(a+j,2)}, {vr(T+j,2)}")
        for j in range(0, 8, 2): e(f"v_cvt_pk_bf16_f32 v{O+j//2}, v{a+j}, v{a+j+1}")
        e(f"buffer_store_dwordx4 {vr(O,4)}, v9, s[56:59], s19 offen")
finish()

e("K1_gate:")
e(f"v_lshlrev_b32 v8, 4, v15"); e(f"v_add_u32 v8, {GATE_LDS}, v8")
mainloop("gate")
e("v_lshlrev_b32 v9, 2, v2")
e(f"s_add_u32 s60, s14, {G_OFF}"); e("s_addc_u32 s61, s15, 0"); e("s_mov_b32 s62, 8192"); e("s_mov_b32 s63, 0x20000")
e("s_lshl_b32 s17, s33, 7")
e("s_mov_b32 exec_hi, 0")
for rt in range(3):
    a = ACC(rt, 0)
    e(f"v_mul_f32 v64, {NLOG2E}, v{a}"); e("v_exp_f32 v64, v64"); e("v_add_f32 v64, 1.0, v64"); e(f"v_rcp_f32 v{70+rt}, v64")
    e(f"buffer_store_dword v{70+rt}, v9, s[60:63], s17 offen offset:{rt*128}")
e("s_mov_b64 exec, -1")
finish()

e("K1_qkv:")
e("v_lshrrev_b32 v65, 1, v65"); e("v_xor_b32 v65, s32, v65")
e("v_lshlrev_b32 v8, 7, v67"); e("v_lshl_add_u32 v8, v65, 6, v8"); e("v_lshl_add_u32 v8, v64, 5, v8"); e("v_lshl_add_u32 v8, v66, 3, v8")
e(f"v_add_u32 v8, {WOFF}, v8")
mainloop("qkv")
e(f"s_mov_b32 s60, {LOG2E}"); e(f"s_mov_b32 s61, {LOG2E}"); e(f"s_mov_b32 s62, {EPS}"); e(f"s_mov_b32 s63, {EPS}")
def phi(a, O):
    for half in range(2):
        T = 64 + 8 * half; b = a + 8 * half
        for j in range(0, 8, 2): e(f"v_pk_mul_f32 {vr(T+j,2)}, {vr(b+j,2)}, s[60:61]")
        for j in range(8): e(f"v_exp_f32 v{T+j}, v{T+j} clamp")
        for j in range(8): e(f"v_max_f32 v{b+j}, 0, v{b+j}")
        for j in range(0, 8, 2): e(f"v_pk_add_f32 {vr(b+j,2)}, {vr(b+j,2)}, {vr(T+j,2)}")
        for j in range(0, 8, 2): e(f"v_pk_add_f32 {vr(b+j,2)}, {vr(b+j,2)}, s[62:63]")
        for j in range(0, 8, 2): e(f"v_cvt_pk_bf16_f32 v{O+4*half+j//2}, v{b+j}, v{b+j+1}")
D2, D3, PK, VV, ONE = 16, 32, 80, 88, 96
e("s_waitcnt lgkmcnt(0)")
for i in range(4): e(f"v_mov_b32 v{ONE+i}, 0x3f803f80")
for rt in range(3):
    if rt == 1:
        e("s_cmp_ge_u32 s33, 63"); e("s_cbranch_scc1 K1_kv_done")
    phi(ACC(rt, 1), PK)
    for j in range(8): e(f"v_cvt_pk_bf16_f32 v{VV+j}, v{ACC(rt,2)+2*j}, v{ACC(rt,2)+2*j+1}")
    for t in range(2):
        c2 = "0" if (rt == 0 and t == 0) else vr(D2, 16); c3 = "0" if (rt == 0 and t == 0) else vr(D3, 16)
        e(f"v_mfma_f32_32x32x16_bf16 {vr(D2,16)}, {vr(PK+4*t,4)}, {vr(VV+4*t,4)}, {c2}")
        e(f"v_mfma_f32_32x32x16_bf16 {vr(D3,16)}, {vr(PK+4*t,4)}, {vr(ONE,4)}, {c3}")
e("K1_kv_done:")
e("v_bfe_u32 v64, v2, 4, 1"); e("v_and_b32 v65, 15, v2")
e("v_cmp_eq_u32 vcc, 1, v64")
e("s_mul_i32 s16, s31, 4352"); e("s_mul_i32 s17, s32, 2176"); e("s_add_u32 s16, s16, s17")
e("v_mul_u32_u24 v64, 1088, v64"); e("v_mul_u32_u24 v66, 272, v15"); e("v_add3_u32 v64, v64, v66, s16"); e("v_lshl_add_u32 v64, v65, 4, v64")
e("s_nop 4")
for j in range(8): e(f"v_cndmask_b32 v{D2+j}, v{D2+j}, v{D2+8+j}, vcc")
for j in range(8): e(f"v_cndmask_b32 v{D3+j}, v{D3+j}, v{D3+8+j}, vcc")
e(f"ds_write_b128 v64, {vr(D2,4)}"); e(f"ds_write_b128 v64, {vr(D2+4,4)} offset:544")
e("s_mov_b32 exec_lo, 0x00010001"); e("s_mov_b32 exec_hi, 0x00010001")
e(f"ds_write_b128 v64, {vr(D3,4)} offset:256"); e(f"ds_write_b128 v64, {vr(D3+4,4)} offset:800")
e("s_mov_b64 exec, -1")
e("v_lshlrev_b32 v65, 2, v0")
e("s_waitcnt lgkmcnt(0)"); e("s_barrier")
for i in range(5):
    e(f"ds_read_b32 v{16+2*i}, v65 offset:{1024*i}"); e(f"ds_read_b32 v{17+2*i}, v65 offset:{1024*i+4352}")
e("s_mul_i32 s16, s27, 4352"); e(f"s_add_u32 s16, s16, {KV_OFF}")
e("s_waitcnt lgkmcnt(0)")
for i in range(5): e(f"v_add_f32 v{16+2*i}, v{16+2*i}, v{17+2*i}")
for i in range(4): e(f"buffer_atomic_add_f32 v{16+2*i}, v65, s[48:51], s16 offen offset:{1024*i}")
e("s_cmp_eq_u32 s24, 0"); e("s_cbranch_scc0 K1_kv_skip")
e("s_add_u32 s16, s16, 4096")
e("buffer_atomic_add_f32 v24, v65, s[48:51], s16 offen")
e("K1_kv_skip:")
e("v_lshlrev_b32 v9, 4, v2")
e("s_lshl_b32 s16, s27, 2"); e("s_lshl_b32 s17, s32, 1"); e("s_add_u32 s16, s16, s17"); e("s_add_u32 s16, s16, 86")
e("s_mul_i32 s17, s33, 118"); e("s_add_u32 s17, s17, s16"); e("s_lshl_b32 s17, s17, 10")
for rt in range(3):
    O = 80 + 8 * rt
    phi(ACC(rt, 0), O)
    e(f"s_add_u32 s19, s17, {rt*118*1024}")
    e(f"buffer_store_dwordx4 {vr(O,4)}, v9, s[56:59], s19 offen")
    e(f"buffer_store_dwordx4 {vr(O+4,4)}, v9, s[56:59], s19 offen offset:1024")
finish()
e("K1_end:")
e("s_endpgm")

D = 6; NT = 30; RED = 49152
ACT = lambda t, m: 64 + 8 * (t % D) + 4 * m
WF2 = lambda t, ct: 112 + 8 * (t & 1) + 4 * ct
TMP = lambda m: 128 + 16 * m
KVF = lambda hh: 160 + 4 * hh
ACC2 = lambda m, ct: 192 + 16 * (2 * m + ct)
kernel_begin(e, "k2_kernel")
e("s_load_dwordx2 s[4:5], s[0:1], 16")
e("s_load_dwordx2 s[6:7], s[0:1], 48")
e("s_load_dwordx2 s[8:9], s[0:1], 64")
e("s_load_dwordx2 s[14:15], s[0:1], 80")
e("s_cmp_ge_u32 s2, 256"); e("s_cbranch_scc1 K2_end")
if STAMP: e("v_mov_b32 v3, 0")
rstamp(30, 3); stamp(0, 3)
e("v_lshrrev_b32 v1, 6, v0"); e("v_and_b32 v2, 63, v0")
e("s_and_b32 s16, s2, 7"); e("s_lshr_b32 s17, s2, 6"); e("s_lshl_b32 s16, s16, 2"); e("s_add_u32 s25, s16, s17")
e("v_readfirstlane_b32 s24, v1")
e("s_bfe_u32 s26, s2, 0x30003")
e("s_add_u32 s30, s25, s26"); e(f"s_and_b32 s30, s30, {ROT2-1}"); e(f"s_mul_i32 s30, s30, {22//ROT2}")
e("v_lshlrev_b32 v4, 4, v2"); e(f"v_add_u32 v5, {118*1024}, v4")
e("v_lshrrev_b32 v16, 3, v2"); e("v_and_b32 v17, 7, v2"); e("v_bfe_u32 v18, v2, 4, 1"); e("v_lshlrev_b32 v19, 2, v18"); e("v_xor_b32 v17, v17, v19")
e("s_lshl_b32 s16, s26, 7")
e("v_lshlrev_b32 v6, 10, v16"); e("v_lshl_add_u32 v6, v17, 4, v6"); e("v_add_u32 v6, s16, v6"); e("v_add_u32 v7, 8192, v6")
e("v_lshrrev_b32 v15, 5, v2"); e("v_bfe_u32 v19, v2, 2, 2")
e("v_lshl_add_u32 v20, v15, 3, v19"); e("v_lshrrev_b32 v19, 1, v19")
e("v_and_b32 v21, 1, v2"); e("v_bfe_u32 v22, v2, 1, 1"); e("v_lshl_or_b32 v21, v21, 2, v22"); e("v_lshl_or_b32 v21, v18, 1, v21")
e(f"s_mul_i32 s34, s24, {D*2048}")
e("v_lshlrev_b32 v8, 7, v20"); e("v_lshl_add_u32 v8, v19, 6, v8"); e("v_lshl_add_u32 v8, v21, 3, v8"); e("v_add_u32 v8, s34, v8"); e("v_xor_b32 v9, 64, v8")
e("v_and_b32 v14, 31, v2"); e("v_min_u32 v10, 16, v14"); e("v_mul_u32_u24 v11, 272, v15"); e("v_lshl_add_u32 v10, v10, 4, v11")
e("v_lshlrev_b32 v11, 2, v14")
e("s_mul_i32 s33, s25, %d" % (2 * 118 * 1024))
e("s_waitcnt lgkmcnt(0)")
srd(e, 40, 6, 1376 * 1024); srd(e, 44, 4, 512 * 1024); srd(e, 48, 14, 0x10000000); srd(e, 52, 8, 0x200000); srd(e, 56, 14, ACT_BYTES)
stamp(1, 3)
e("s_lshl_b32 s16, s25, 8"); e(f"s_add_u32 s16, s16, {G_OFF}")
e("buffer_load_dword v12, v11, s[48:51], s16 offen"); e("buffer_load_dword v13, v11, s[48:51], s16 offen offset:128")
e("s_mul_i32 s16, s24, %d" % (8 * 1088)); e(f"s_add_u32 s16, s16, {KV_OFF}")
for hh in range(8):
    if hh and hh % 3 == 0: e("s_add_u32 s16, s16, %d" % (3 * 1088))
    for p in range(2):
        e(f"buffer_load_dwordx4 {vr(128+8*hh+4*p,4)}, v10, s[48:51], s16 offen offset:{(hh%3)*1088 + p*544}")
def issue2(t):
    L = []
    if t < 22:
        a = f"s_add_u32 s36, s30, {t}\ns_cmp_ge_u32 s36, 22\ns_cselect_b32 s37, 22, 0\ns_sub_u32 s36, s36, s37\ns_lshl_b32 s36, s36, 2\ns_add_u32 s36, s36, s24"
        a += "\ns_lshl_b32 s37, s36, 14"
        w = 40
    else:
        a = f"s_lshl_b32 s36, s24, 3\ns_add_u32 s36, s36, {t-22}\ns_lshl_b32 s37, s36, 14\ns_add_u32 s36, s36, 86"
        w = 44
    a += "\ns_lshl_b32 s36, s36, 10\ns_add_u32 s36, s36, s33"
    L.append(a + f"\ns_add_u32 m0, s34, {(t % D) * 2048}\nbuffer_load_dwordx4 v6, s[{w}:{w+3}], s37 offen lds")
    L.append(f"s_add_u32 m0, s34, {(t % D) * 2048 + 1024}\nbuffer_load_dwordx4 v7, s[{w}:{w+3}], s37 offen lds")
    L.append(f"buffer_load_dwordx4 {vr(ACT(t,0),4)}, v4, s[56:59], s36 offen")
    L.append(f"buffer_load_dwordx4 {vr(ACT(t,1),4)}, v5, s[56:59], s36 offen")
    return L
def trreads(t):
    return [f"ds_read_b64_tr_b16 {vr(WF2(t,ct)+2*i,2)}, v{8+ct} offset:{(t % D)*2048 + i*512}" for ct in range(2) for i in range(2)]
for t in range(D):
    for l in issue2(t): e(l)
for i in range(64): e(f"v_mov_b32 v{192+i}, 0")
e(f"s_waitcnt vmcnt({4*D})")
for hh in range(7, -1, -1):
    for j in range(3, -1, -1): e(f"v_cvt_pk_bf16_f32 v{KVF(hh)+j}, v{128+8*hh+2*j}, v{128+8*hh+2*j+1}")
e("v_sub_f32 v16, 1.0, v12"); e("v_sub_f32 v18, 1.0, v13")
e(f"s_waitcnt vmcnt({4*(D-1)})")
stamp(2, 3)
for l in trreads(0): e(l)
for t in range(NT):
    if t + 1 < NT:
        e(f"s_waitcnt vmcnt({4 * (min(t + D - 1, NT - 1) - (t + 1))})")
        for l in trreads(t + 1): e(l)
        if t + 1 >= 22:
            for m in range(2): e(f"v_mfma_f32_32x32x16_bf16 {vr(TMP(m),16)}, {vr(KVF(t+1-22),4)}, {vr(ACT(t+1,m),4)}, 0")
        e("s_waitcnt lgkmcnt(4)")
    else:
        e("s_waitcnt lgkmcnt(0)")
    L = issue2(t + D) if t + D < NT else []
    for m in range(2):
        for ct in range(2):
            e(f"v_mfma_f32_32x32x16_bf16 {vr(ACC2(m,ct),16)}, {vr(WF2(t,ct),4)}, {vr(ACT(t,m),4)}, {vr(ACC2(m,ct),16)}")
            if L: e(L.pop(0))
    if 22 <= t + 1 < NT:
        for m in range(2):
            T = TMP(m)
            e(f"v_add_f32 v20, {EPS}, v{T+8}"); e("v_rcp_f32 v20, v20"); e(f"v_mul_f32 v20, v20, v{12+m}")
            for j in range(0, 8, 2): e(f"v_pk_mul_f32 {vr(T+j,2)}, {vr(T+j,2)}, v[20:21] op_sel_hi:[1,0]")
            for j in range(0, 8, 2): e(f"v_cvt_pk_bf16_f32 v{ACT(t+1,m)+j//2}, v{T+j}, v{T+j+1}")
    if t == 21:
        stamp(3, 3)
        for m in range(2):
            for j in range(0, 32, 2): e(f"v_pk_mul_f32 {vr(ACC2(m,0)+j,2)}, {vr(ACC2(m,0)+j,2)}, {vr(16+2*m,2)} op_sel_hi:[1,0]")
stamp(4, 3)
e("s_mul_i32 s16, s24, %d" % (64 * 272)); e(f"s_add_u32 s16, s16, {RED}")
e("v_mul_u32_u24 v20, 272, v14"); e("v_lshl_add_u32 v20, v15, 6, v20"); e("v_add_u32 v20, s16, v20")
for m in range(2):
    for ct in range(2):
        for q in range(4): e(f"ds_write_b128 v20, {vr(ACC2(m,ct)+4*q,4)} offset:{m*32*272 + ct*128 + q*16}")
e("v_lshrrev_b32 v16, 3, v2"); e("v_and_b32 v17, 7, v2")
e("s_mul_i32 s16, s24, %d" % (16 * 272)); e(f"s_add_u32 s16, s16, {RED}")
e("v_mul_u32_u24 v21, 272, v16"); e("v_lshl_add_u32 v21, v17, 5, v21"); e("v_add_u32 v21, s16, v21")
e("v_lshlrev_b32 v22, 10, v16"); e("v_lshl_add_u32 v22, v17, 4, v22")
e("s_lshl_b32 s16, s25, 16"); e("s_lshl_b32 s17, s24, 14"); e("s_add_u32 s16, s16, s17"); e("s_lshl_b32 s17, s26, 7"); e("s_add_u32 s16, s16, s17"); e("s_add_u32 s17, s16, 8192")
e("s_waitcnt lgkmcnt(0)"); e("s_barrier")
for s in range(2):
    for w in range(4):
        for q in range(2): e(f"ds_read_b128 {vr(64+32*s+8*w+4*q,4)}, v21 offset:{w*64*272 + s*8*272 + q*16}")
for s in range(2):
    B = 64 + 32 * s
    e(f"s_waitcnt lgkmcnt({8*(1-s)})")
    for j in range(0, 8, 2):
        e(f"v_pk_add_f32 {vr(B+j,2)}, {vr(B+j,2)}, {vr(B+8+j,2)}"); e(f"v_pk_add_f32 {vr(B+16+j,2)}, {vr(B+16+j,2)}, {vr(B+24+j,2)}")
    for j in range(0, 8, 2): e(f"v_pk_add_f32 {vr(B+j,2)}, {vr(B+j,2)}, {vr(B+16+j,2)}")
    for j in range(0, 8, 2): e(f"v_cvt_pk_bf16_f32 v{B+8+j//2}, v{B+j}, v{B+j+1}")
    e(f"buffer_store_dwordx4 {vr(B+8,4)}, v22, s[52:55], s{16+s} offen")
if STAMP:
    stamp(5, 3); e("s_waitcnt vmcnt(0)"); stamp(6, 3); rstamp(31, 3); stamp_store(3, 1, 48, 2, "s24")
e("K2_end:")
e("s_endpgm")
descriptors(e, [("k0_kernel", 8, 8, 16), ("k1_kernel", 256, 256, 102), ("k2_kernel", 256, 256, 102)])
lines, n = hazard.fix(e.L, verbose=bool(int(OPT.get("v", 0))))
sys.stderr.write(f"inserted {n} nops\n")
open(OPT.get("o", "v1.s"), "w").write("\n".join(lines) + "\n")
```

```python
import sys
from asmlib import *
import hazard
OPT = dict(a.split("=") for a in sys.argv[1:] if "=" in a)
ROT1 = int(OPT.get("rot1", 4))
ROT2 = int(OPT.get("rot2", 2))
STAMP = int(OPT.get("stamp", 0))
ACT_BYTES = 64 * 118 * 1024
G_OFF = 0x780000; KV_OFF = 0x790000; ST_OFF = 0x800000
HUGE = 0x7f000000
SLOT = 49408; WOFF = 24576; GATE_LDS = 3 * SLOT
LOG2E = "0x3fb8aa3b"; NLOG2E = "0xbfb8aa3b"; EPS = "0x358637bd"
e = Asm()
header(e, ["; @launch kernel=k0_kernel grid=(9,1,1) block=(256,1,1) lds=0",
           f"; @launch kernel=k1_kernel grid=(256,1,1) block=(512,1,1) lds={GATE_LDS+1024}",
           f"; @launch kernel=k2_kernel grid=(256,1,1) block=(256,1,1) lds={49152+69632}"])
def vr(b, n): return f"v[{b}:{b+n-1}]"
def stamp(idx, vreg):
    if STAMP:
        e("s_memtime s[98:99]"); e("s_memrealtime s[100:101]"); e("s_waitcnt lgkmcnt(0)"); e(f"v_writelane_b32 v{vreg}, s98, {idx}"); e(f"v_writelane_b32 v{vreg}, s100, {32+idx}")
def rstamp(idx, vreg):
    if STAMP:
        e("s_memrealtime s[98:99]"); e("s_waitcnt lgkmcnt(0)"); e(f"v_writelane_b32 v{vreg}, s98, {idx}")
def stamp_store(vreg, kern, srdws, vlane, swave):
    if STAMP:
        e(f"s_lshl_b32 s97, s2, 3"); e(f"s_add_u32 s97, s97, {swave}"); e("s_lshl_b32 s97, s97, 8")
        e(f"s_add_u32 s97, s97, {ST_OFF + kern * 0x80000}")
        e(f"v_lshlrev_b32 v1, 2, v{vlane}")
        e(f"buffer_store_dword v{vreg}, v1, s[{srdws}:{srdws+3}], s97 offen")

kernel_begin(e, "k0_kernel")
e("s_load_dwordx2 s[4:5], s[0:1], 80")
e("s_lshl_b32 s3, s2, 12")
e("v_lshl_add_u32 v1, v0, 4, s3")
for i in range(4): e(f"v_mov_b32 v{4+i}, 0")
e("s_waitcnt lgkmcnt(0)")
e(f"s_add_u32 s8, s4, {KV_OFF}"); e("s_addc_u32 s9, s5, 0"); e("s_mov_b32 s10, 34816"); e("s_mov_b32 s11, 0x20000")
e("buffer_store_dwordx4 v[4:7], v1, s[8:11], 0 offen")
e("s_endpgm")

kernel_begin(e, "k1_kernel")
e("s_load_dwordx4 s[4:7], s[0:1], 0")
e("s_load_dwordx4 s[8:11], s[0:1], 32")
e("s_load_dwordx2 s[12:13], s[0:1], 56")
e("s_load_dwordx2 s[14:15], s[0:1], 80")
e("s_cmp_ge_u32 s2, 256"); e("s_cbranch_scc1 K1_end")
e("s_and_b32 s16, s2, 7"); e("s_lshr_b32 s17, s2, 3"); e("s_lshl_b32 s16, s16, 5"); e("s_add_u32 s16, s16, s17")
e("s_cmp_ge_u32 s16, 253"); e("s_cbranch_scc1 K1_end")
e("v_lshrrev_b32 v1, 6, v0"); e("v_and_b32 v2, 63, v0")
e("s_mov_b32 s17, 0"); e("s_mov_b32 s18, 6"); e("s_mov_b32 s19, 0"); e("s_mov_b32 s20, 0")
for lim, d, c0, r0 in [(78, 5, 13, 0), (128, 5, 0, 6), (193, 6, 13, 5)]:
    e(f"s_cmp_ge_u32 s16, {lim}")
    e(f"s_cselect_b32 s17, {lim}, s17"); e(f"s_cselect_b32 s18, {d}, s18"); e(f"s_cselect_b32 s19, {c0}, s19"); e(f"s_cselect_b32 s20, {r0}, s20")
e("v_readfirstlane_b32 s24, v1")
e("s_sub_u32 s16, s16, s17")
e("s_cmp_eq_u32 s18, 6"); e("s_movk_i32 s21, 205"); e("s_cselect_b32 s21, 171, s21")
e("s_mul_i32 s21, s21, s16"); e("s_lshr_b32 s21, s21, 10")
e("s_mul_i32 s22, s21, s18"); e("s_sub_u32 s22, s16, s22")
e("s_add_u32 s25, s20, s22")
e("s_add_u32 s26, s19, s21")
e("s_mul_i32 s27, s26, 171"); e("s_lshr_b32 s27, s27, 9")
e("s_mul_i32 s16, s27, 3"); e("s_sub_u32 s28, s26, s16")
e("s_sub_u32 s29, s26, s27"); e("s_sub_u32 s29, s29, 1")
e("s_add_u32 s30, s25, s26"); e(f"s_and_b32 s30, s30, {ROT1-1}"); e(f"s_mul_i32 s30, s30, {8//ROT1}")
if STAMP: e("v_mov_b32 v3, 0")
e("s_cmp_ge_u32 s24, 4"); e("s_cbranch_scc0 K1_cons")
e("s_sub_u32 s31, s24, 4")
e("v_lshrrev_b32 v4, 3, v2"); e("v_and_b32 v5, 7, v2"); e("v_lshrrev_b32 v6, 4, v2")
e("v_xor_b32 v6, v5, v6")
e("s_mul_i32 s16, s25, 192"); e("s_mul_i32 s17, s31, 48"); e("s_add_u32 s16, s16, s17"); e("s_lshl_b32 s16, s16, 10")
e("v_lshlrev_b32 v7, 10, v4"); e("v_add_u32 v7, s16, v7")
e("v_lshl_add_u32 v10, v6, 4, v7")
e("v_xor_b32 v11, 64, v10"); e("v_add_u32 v11, 8192, v11")
for i in range(2, 6): e(f"v_add_u32 v{10+i}, {8192*(i-(i&1))}, v{10+(i&1)}")
e("s_cmp_eq_u32 s28, 0"); e("s_cbranch_scc1 K1_ld_qkv")
e("s_and_b32 s16, s31, 1"); e("s_mul_i32 s16, s16, 384")
e("s_mul_i32 s17, s29, 12"); e("s_movk_i32 s18, 2752"); e(f"v_mov_b32 v9, {HUGE}")
for i in range(6):
    e(f"s_add_u32 s19, s16, {64*i}")
    e("v_add_u32 v6, s19, v2")
    e("v_mul_u32_u24 v7, 5462, v6"); e("v_lshrrev_b32 v7, 16, v7")
    e("v_mul_u32_u24 v8, 12, v7"); e("v_sub_u32 v8, v6, v8"); e("v_add_u32 v8, s17, v8")
    e("v_cmp_gt_u32 vcc, 172, v8")
    e("v_mul_u32_u24 v7, s18, v7"); e("v_lshl_add_u32 v7, v8, 4, v7")
    e(f"v_cndmask_b32 v{16+i}, v9, v7, vcc")
e("s_mov_b32 s33, %d" % (64 * 2752))
e("s_lshr_b32 s16, s31, 1"); e("s_lshl_b32 s16, s16, 5")
e("s_waitcnt lgkmcnt(0)")
e("s_cmp_ge_u32 s31, 2"); e("s_cselect_b32 s44, s10, s8"); e("s_cselect_b32 s45, s11, s9"); e("s_mov_b32 s46, %d" % (512 * 2752))
e("s_branch K1_ld_go")
e("K1_ld_qkv:")
e("v_lshrrev_b32 v6, 4, v2"); e("v_and_b32 v6, 1, v6"); e("v_lshlrev_b32 v6, 2, v6"); e("v_xor_b32 v6, v5, v6")
e("v_mul_u32_u24 v7, 3072, v4"); e("v_lshl_add_u32 v7, v6, 4, v7")
e("s_lshl_b32 s17, s27, 7")
for i in range(6):
    e(f"s_mul_i32 s16, s31, 6"); e(f"s_add_u32 s16, s16, {i}")
    e("s_lshr_b32 s18, s16, 3"); e("s_lshl_b32 s18, s18, 10"); e("s_and_b32 s16, s16, 7"); e("s_mul_i32 s16, s16, %d" % (8 * 3072))
    e("s_add_u32 s16, s16, s18"); e("s_add_u32 s16, s16, s17")
    e(f"v_add_u32 v{16+i}, s16, v7")
e("s_mov_b32 s33, %d" % (64 * 3072))
e("s_mov_b32 s16, 0")
e("s_waitcnt lgkmcnt(0)")
e("s_mov_b32 s44, s6"); e("s_mov_b32 s45, s7"); e("s_mov_b32 s46, %d" % (512 * 3072))
e("K1_ld_go:")
e("s_mov_b32 s47, 0x20000")
srd(e, 40, 4, 0x200000)
srd(e, 52, 12, 1024)
e("s_mul_i32 s34, s31, 6144")
e(f"s_add_u32 s35, s34, {WOFF}"); e("s_add_u32 s35, s35, s16")
stamp(0, 3)
e("v_lshlrev_b32 v8, 4, v2"); e(f"s_mov_b32 m0, {GATE_LDS}")
e("buffer_load_dwordx4 v8, s[52:55], 0 offen lds")
def issue1(st):
    e(f"s_add_u32 s36, s30, {st}"); e("s_and_b32 s36, s36, 7")
    e("s_mul_i32 s37, s36, s33"); e("s_lshl_b32 s36, s36, 7")
    for i in range(6):
        e(f"s_add_u32 m0, s34, {(st % 3) * SLOT + i * 1024}")
        e(f"buffer_load_dwordx4 v{10+i}, s[40:43], s36 offen lds")
        e(f"s_add_u32 m0, s35, {(st % 3) * SLOT + i * 1024}")
        e(f"buffer_load_dwordx4 v{16+i}, s[44:47], s37 offen lds")
for st in range(2): issue1(st)
e("s_waitcnt vmcnt(12)"); e("s_barrier")
issue1(2)
for s in range(8):
    if s + 1 <= 7: e(f"s_waitcnt vmcnt({12 * (min(s + 2, 7) - (s + 1))})")
    stamp(1 + s, 3)
    e("s_barrier")
    if s + 3 <= 7: issue1(s + 3)
if STAMP:
    srd(e, 48, 14, 0x10000000); stamp_store(3, 0, 48, 2, "s24")
e("s_endpgm")

XF = lambda b, rt: 16 + 12 * b + 4 * rt
WF = lambda b, ct: 40 + 12 * b + 4 * ct
ACC = lambda rt, ct: 112 + 16 * (3 * rt + ct)
e("K1_cons:")
rstamp(30, 3); stamp(0, 3)
e("s_lshr_b32 s31, s24, 1"); e("s_and_b32 s32, s24, 1")
e("v_and_b32 v9, 31, v2"); e("v_lshrrev_b32 v15, 5, v2")
e("s_mul_i32 s16, s31, %d" % (96 * 128))
e("v_lshlrev_b32 v64, 7, v9"); e("v_add_u32 v64, s16, v64")
e("v_bfe_u32 v65, v2, 1, 3"); e("v_xor_b32 v65, v65, v15")
for ks in range(4):
    e(f"v_xor_b32 v66, {2*ks}, v65"); e(f"v_lshl_add_u32 v{4+ks}, v66, 4, v64")
e("v_bfe_u32 v64, v2, 4, 1"); e("v_bfe_u32 v65, v2, 2, 2")
e("v_and_b32 v66, 1, v2"); e("v_bfe_u32 v67, v2, 1, 1"); e("v_lshl_or_b32 v66, v66, 1, v67")
e("v_lshl_add_u32 v67, v15, 3, v65")
for i in range(144): e(f"v_mov_b32 v{112+i}, 0")
e("s_waitcnt lgkmcnt(0)")
srd(e, 48, 14, 0x10000000)
srd(e, 56, 14, ACT_BYTES)
e("s_mul_i32 s16, s25, 6"); e("s_mul_i32 s17, s31, 3"); e("s_add_u32 s33, s16, s17")
e("s_cmp_eq_u32 s28, 0"); e("s_cbranch_scc1 K1_qkv")
e("s_cmp_eq_u32 s29, 14"); e("s_cselect_b32 s16, s32, 0"); e("s_cmp_eq_u32 s16, 1"); e("s_cbranch_scc1 K1_gate")

def mainloop(typ):
    rowb = 192 if typ == "w13" else 128
    ctb = 32 if typ == "w13" else 8192
    def reads(b, ks):
        R = []
        X = [f"ds_read_b128 {vr(XF(b, rt), 4)}, v{10+ks} offset:{rt*4096}" for rt in range(3)]
        if typ == "gate":
            return [f"ds_read_b128 {vr(WF(b, 0), 4)}, v14 offset:{ks*32}"] + X
        W = [[f"ds_read_b64_tr_b16 {vr(WF(b, ct) + 2*i, 2)}, v14 offset:{(16*ks + 4*i) * rowb + ct * ctb}" for i in range(2)] for ct in range(3)]
        return W[0] + X + W[1] + W[2]
    def mfmas(b):
        M = []
        for ct in range(1 if typ == "gate" else 3):
            for rt in range(3):
                A, B = vr(WF(b, ct), 4), vr(XF(b, rt), 4)
                if typ == "qkv" and ct > 0: A, B = B, A
                M.append(f"v_mfma_f32_32x32x16_bf16 {vr(ACC(rt, ct), 16)}, {A}, {B}, {vr(ACC(rt, ct), 16)}")
        return M
    for ks in range(4): e(f"v_mov_b32 v{10+ks}, v{4+ks}")
    if typ == "gate":
        e("s_mov_b32 s36, s30"); e("s_lshl_b32 s37, s36, 7"); e("v_add_u32 v14, s37, v8")
    else:
        e("v_mov_b32 v14, v8")
    e("s_mov_b32 s34, 0"); e("s_mov_b32 s35, 0")
    e("s_barrier")
    stamp(1, 3)
    for r in reads(0, 0): e(r)
    e(".p2align 3")
    e(f"K1_loop_{typ}:")
    for ks in range(4):
        b = ks & 1
        R = reads(1 - b, (ks + 1) & 3); M = mfmas(b); X = []
        e("s_waitcnt lgkmcnt(0)")
        if ks == 3:
            e("s_barrier")
            e("v_add_u32 v10, s34, v4")
            e("v_add_u32 v14, s37, v8" if typ == "gate" else "v_add_u32 v14, s34, v8")
            X = [f"v_add_u32_e64 v{10+k}, s34, v{4+k}" for k in range(1, 4)]
        else:
            e("s_nop 0")
        if ks == 2:
            X = [f"s_add_u32 s34, s34, {SLOT}", f"s_cmp_eq_u32 s34, {3*SLOT}", "s_cselect_b32 s34, 0, s34\ns_add_u32 s35, s35, 1"]
            if typ == "gate": X[2] += "\ns_add_u32 s36, s36, 1\ns_and_b32 s36, s36, 7\ns_lshl_b32 s37, s36, 7\ns_nop 0"
        for k, m in enumerate(M):
            e(m)
            for _ in range(2):
                if R: e(R.pop(0))
            if not R and X and (k >= 5 or typ == "gate"): e(X.pop(0))
        for x in X: e(x)
    e("s_cmp_lt_u32 s35, 8"); e(f"s_cbranch_scc1 K1_loop_{typ}")
    stamp(2, 3)

def finish():
    if STAMP:
        stamp(3, 3); e("s_waitcnt vmcnt(0)"); stamp(4, 3); rstamp(31, 3); stamp_store(3, 0, 48, 2, "s24")
    e("s_endpgm")

e("s_mul_i32 s16, s32, 96"); e(f"s_add_u32 s16, s16, {WOFF}")
e("v_mul_u32_u24 v8, %d, v64" % (12288 + 32)); e("v_mul_u32_u24 v67, 192, v67"); e("v_add3_u32 v8, v8, v67, s16"); e("v_lshl_add_u32 v8, v66, 3, v8")
mainloop("w13")
e("v_lshlrev_b32 v9, 4, v2")
e("s_mul_i32 s16, s29, 6"); e("s_mul_i32 s17, s32, 3"); e("s_add_u32 s16, s16, s17")
e("s_mul_i32 s17, s33, 118"); e("s_add_u32 s17, s17, s16"); e("s_lshl_b32 s17, s17, 10")
e(f"s_mov_b32 s60, {NLOG2E}"); e(f"s_mov_b32 s61, {NLOG2E}")
n = 0
for ct in range(3):
    e(f"s_add_u32 s18, s17, {ct*1024}"); e(f"s_cmp_lt_u32 s16, {86-ct}"); e(f"s_cselect_b32 s18, s18, {HUGE}")
    for rt in range(3):
        a = ACC(rt, ct); T = 64 + 8 * (n & 1); O = 80 + 4 * (n & 3); n += 1
        for j in range(0, 8, 2): e(f"v_pk_mul_f32 {vr(T+j,2)}, {vr(a+j,2)}, s[60:61]")
        for j in range(8): e(f"v_exp_f32 v{T+j}, v{T+j}")
        for j in range(0, 8, 2): e(f"v_pk_mul_f32 {vr(a+j,2)}, {vr(a+j,2)}, {vr(a+8+j,2)}")
        for j in range(0, 8, 2): e(f"v_pk_add_f32 {vr(T+j,2)}, {vr(T+j,2)}, 1.0 op_sel_hi:[1,0]")
        for j in range(8): e(f"v_rcp_f32 v{T+j}, v{T+j}")
        e(f"s_add_u32 s19, s18, {rt*118*1024}")
        for j in range(0, 8, 2): e(f"v_pk_mul_f32 {vr(a+j,2)}, {vr(a+j,2)}, {vr(T+j,2)}")
        for j in range(0, 8, 2): e(f"v_cvt_pk_bf16_f32 v{O+j//2}, v{a+j}, v{a+j+1}")
        e(f"buffer_store_dwordx4 {vr(O,4)}, v9, s[56:59], s19 offen")
finish()

e("K1_gate:")
e(f"v_lshlrev_b32 v8, 4, v15"); e(f"v_add_u32 v8, {GATE_LDS}, v8")
mainloop("gate")
e("v_lshlrev_b32 v9, 2, v2")
e(f"s_add_u32 s60, s14, {G_OFF}"); e("s_addc_u32 s61, s15, 0"); e("s_mov_b32 s62, 8192"); e("s_mov_b32 s63, 0x20000")
e("s_lshl_b32 s17, s33, 7")
e("s_mov_b32 exec_hi, 0")
for rt in range(3):
    a = ACC(rt, 0)
    e(f"v_mul_f32 v64, {NLOG2E}, v{a}"); e("v_exp_f32 v64, v64"); e("v_add_f32 v64, 1.0, v64"); e(f"v_rcp_f32 v{70+rt}, v64")
    e(f"buffer_store_dword v{70+rt}, v9, s[60:63], s17 offen offset:{rt*128}")
e("s_mov_b64 exec, -1")
finish()

e("K1_qkv:")
e("v_lshrrev_b32 v65, 1, v65"); e("v_xor_b32 v65, s32, v65")
e("v_lshlrev_b32 v8, 7, v67"); e("v_lshl_add_u32 v8, v65, 6, v8"); e("v_lshl_add_u32 v8, v64, 5, v8"); e("v_lshl_add_u32 v8, v66, 3, v8")
e(f"v_add_u32 v8, {WOFF}, v8")
mainloop("qkv")
e(f"s_mov_b32 s60, {LOG2E}"); e(f"s_mov_b32 s61, {LOG2E}"); e(f"s_mov_b32 s62, {EPS}"); e(f"s_mov_b32 s63, {EPS}")
def phi(a, O):
    for half in range(2):
        T = 64 + 8 * half; b = a + 8 * half
        for j in range(0, 8, 2): e(f"v_pk_mul_f32 {vr(T+j,2)}, {vr(b+j,2)}, s[60:61]")
        for j in range(8): e(f"v_exp_f32 v{T+j}, v{T+j} clamp")
        for j in range(8): e(f"v_max_f32 v{b+j}, 0, v{b+j}")
        for j in range(0, 8, 2): e(f"v_pk_add_f32 {vr(b+j,2)}, {vr(b+j,2)}, {vr(T+j,2)}")
        for j in range(0, 8, 2): e(f"v_pk_add_f32 {vr(b+j,2)}, {vr(b+j,2)}, s[62:63]")
        for j in range(0, 8, 2): e(f"v_cvt_pk_bf16_f32 v{O+4*half+j//2}, v{b+j}, v{b+j+1}")
D2, D3, PK, VV, ONE = 16, 32, 80, 88, 96
e("s_waitcnt lgkmcnt(0)")
for i in range(4): e(f"v_mov_b32 v{ONE+i}, 0x3f803f80")
for rt in range(3):
    if rt == 1:
        e("s_cmp_ge_u32 s33, 63"); e("s_cbranch_scc1 K1_kv_done")
    phi(ACC(rt, 1), PK)
    for j in range(8): e(f"v_cvt_pk_bf16_f32 v{VV+j}, v{ACC(rt,2)+2*j}, v{ACC(rt,2)+2*j+1}")
    for t in range(2):
        c2 = "0" if (rt == 0 and t == 0) else vr(D2, 16); c3 = "0" if (rt == 0 and t == 0) else vr(D3, 16)
        e(f"v_mfma_f32_32x32x16_bf16 {vr(D2,16)}, {vr(PK+4*t,4)}, {vr(VV+4*t,4)}, {c2}")
        e(f"v_mfma_f32_32x32x16_bf16 {vr(D3,16)}, {vr(PK+4*t,4)}, {vr(ONE,4)}, {c3}")
e("K1_kv_done:")
e("v_bfe_u32 v64, v2, 4, 1"); e("v_and_b32 v65, 15, v2")
e("v_cmp_eq_u32 vcc, 1, v64")
e("s_mul_i32 s16, s31, 4352"); e("s_mul_i32 s17, s32, 2176"); e("s_add_u32 s16, s16, s17")
e("v_mul_u32_u24 v64, 1088, v64"); e("v_mul_u32_u24 v66, 272, v15"); e("v_add3_u32 v64, v64, v66, s16"); e("v_lshl_add_u32 v64, v65, 4, v64")
e("s_nop 4")
for j in range(8): e(f"v_cndmask_b32 v{D2+j}, v{D2+j}, v{D2+8+j}, vcc")
for j in range(8): e(f"v_cndmask_b32 v{D3+j}, v{D3+j}, v{D3+8+j}, vcc")
e(f"ds_write_b128 v64, {vr(D2,4)}"); e(f"ds_write_b128 v64, {vr(D2+4,4)} offset:544")
e("s_mov_b32 exec_lo, 0x00010001"); e("s_mov_b32 exec_hi, 0x00010001")
e(f"ds_write_b128 v64, {vr(D3,4)} offset:256"); e(f"ds_write_b128 v64, {vr(D3+4,4)} offset:800")
e("s_mov_b64 exec, -1")
e("v_lshlrev_b32 v65, 2, v0")
e("s_waitcnt lgkmcnt(0)"); e("s_barrier")
for i in range(5):
    e(f"ds_read_b32 v{16+2*i}, v65 offset:{1024*i}"); e(f"ds_read_b32 v{17+2*i}, v65 offset:{1024*i+4352}")
e("s_mul_i32 s16, s27, 4352"); e(f"s_add_u32 s16, s16, {KV_OFF}")
e("s_waitcnt lgkmcnt(0)")
for i in range(5): e(f"v_add_f32 v{16+2*i}, v{16+2*i}, v{17+2*i}")
for i in range(4): e(f"buffer_atomic_add_f32 v{16+2*i}, v65, s[48:51], s16 offen offset:{1024*i}")
e("s_cmp_eq_u32 s24, 0"); e("s_cbranch_scc0 K1_kv_skip")
e("s_add_u32 s16, s16, 4096")
e("buffer_atomic_add_f32 v24, v65, s[48:51], s16 offen")
e("K1_kv_skip:")
e("v_lshlrev_b32 v9, 4, v2")
e("s_lshl_b32 s16, s27, 2"); e("s_lshl_b32 s17, s32, 1"); e("s_add_u32 s16, s16, s17"); e("s_add_u32 s16, s16, 86")
e("s_mul_i32 s17, s33, 118"); e("s_add_u32 s17, s17, s16"); e("s_lshl_b32 s17, s17, 10")
for rt in range(3):
    O = 80 + 8 * rt
    phi(ACC(rt, 0), O)
    e(f"s_add_u32 s19, s17, {rt*118*1024}")
    e(f"buffer_store_dwordx4 {vr(O,4)}, v9, s[56:59], s19 offen")
    e(f"buffer_store_dwordx4 {vr(O+4,4)}, v9, s[56:59], s19 offen offset:1024")
finish()
e("K1_end:")
e("s_endpgm")

D = 6; NT = 30; RED = 49152
ACT = lambda t, m: 64 + 8 * (t % D) + 4 * m
WF2 = lambda t, ct: 112 + 8 * (t & 1) + 4 * ct
TMP = lambda m: 128 + 16 * m
KVF = lambda hh: 160 + 4 * hh
ACC2 = lambda m, ct: 192 + 16 * (2 * m + ct)
kernel_begin(e, "k2_kernel")
e("s_load_dwordx2 s[4:5], s[0:1], 16")
e("s_load_dwordx2 s[6:7], s[0:1], 48")
e("s_load_dwordx2 s[8:9], s[0:1], 64")
e("s_load_dwordx2 s[14:15], s[0:1], 80")
e("s_cmp_ge_u32 s2, 256"); e("s_cbranch_scc1 K2_end")
if STAMP: e("v_mov_b32 v3, 0")
rstamp(30, 3); stamp(0, 3)
e("v_lshrrev_b32 v1, 6, v0"); e("v_and_b32 v2, 63, v0")
e("s_and_b32 s16, s2, 7"); e("s_lshr_b32 s17, s2, 6"); e("s_lshl_b32 s16, s16, 2"); e("s_add_u32 s25, s16, s17")
e("v_readfirstlane_b32 s24, v1")
e("s_bfe_u32 s26, s2, 0x30003")
e("s_add_u32 s30, s25, s26"); e(f"s_and_b32 s30, s30, {ROT2-1}"); e(f"s_mul_i32 s30, s30, {22//ROT2}")
e("v_lshlrev_b32 v4, 4, v2"); e(f"v_add_u32 v5, {118*1024}, v4")
e("v_lshrrev_b32 v16, 3, v2"); e("v_and_b32 v17, 7, v2"); e("v_bfe_u32 v18, v2, 4, 1"); e("v_lshlrev_b32 v19, 2, v18"); e("v_xor_b32 v17, v17, v19")
e("s_lshl_b32 s16, s26, 7")
e("v_lshlrev_b32 v6, 10, v16"); e("v_lshl_add_u32 v6, v17, 4, v6"); e("v_add_u32 v6, s16, v6"); e("v_add_u32 v7, 8192, v6")
e("v_lshrrev_b32 v15, 5, v2"); e("v_bfe_u32 v19, v2, 2, 2")
e("v_lshl_add_u32 v20, v15, 3, v19"); e("v_lshrrev_b32 v19, 1, v19")
e("v_and_b32 v21, 1, v2"); e("v_bfe_u32 v22, v2, 1, 1"); e("v_lshl_or_b32 v21, v21, 2, v22"); e("v_lshl_or_b32 v21, v18, 1, v21")
e(f"s_mul_i32 s34, s24, {D*2048}")
e("v_lshlrev_b32 v8, 7, v20"); e("v_lshl_add_u32 v8, v19, 6, v8"); e("v_lshl_add_u32 v8, v21, 3, v8"); e("v_add_u32 v8, s34, v8"); e("v_xor_b32 v9, 64, v8")
e("v_and_b32 v14, 31, v2"); e("v_min_u32 v10, 16, v14"); e("v_mul_u32_u24 v11, 272, v15"); e("v_lshl_add_u32 v10, v10, 4, v11")
e("v_lshlrev_b32 v11, 2, v14")
e("s_mul_i32 s33, s25, %d" % (2 * 118 * 1024))
e("s_waitcnt lgkmcnt(0)")
srd(e, 40, 6, 1376 * 1024); srd(e, 44, 4, 512 * 1024); srd(e, 48, 14, 0x10000000); srd(e, 52, 8, 0x200000); srd(e, 56, 14, ACT_BYTES)
stamp(1, 3)
e("s_lshl_b32 s16, s25, 8"); e(f"s_add_u32 s16, s16, {G_OFF}")
e("buffer_load_dword v12, v11, s[48:51], s16 offen"); e("buffer_load_dword v13, v11, s[48:51], s16 offen offset:128")
e("s_mul_i32 s16, s24, %d" % (8 * 1088)); e(f"s_add_u32 s16, s16, {KV_OFF}")
for hh in range(8):
    if hh and hh % 3 == 0: e("s_add_u32 s16, s16, %d" % (3 * 1088))
    for p in range(2):
        e(f"buffer_load_dwordx4 {vr(128+8*hh+4*p,4)}, v10, s[48:51], s16 offen offset:{(hh%3)*1088 + p*544}")
def issue2(t):
    L = []
    if t < 22:
        a = f"s_add_u32 s36, s30, {t}\ns_cmp_ge_u32 s36, 22\ns_cselect_b32 s37, 22, 0\ns_sub_u32 s36, s36, s37\ns_lshl_b32 s36, s36, 2\ns_add_u32 s36, s36, s24"
        a += "\ns_lshl_b32 s37, s36, 14"
        w = 40
    else:
        a = f"s_lshl_b32 s36, s24, 3\ns_add_u32 s36, s36, {t-22}\ns_lshl_b32 s37, s36, 14\ns_add_u32 s36, s36, 86"
        w = 44
    a += "\ns_lshl_b32 s36, s36, 10\ns_add_u32 s36, s36, s33"
    L.append(a + f"\ns_add_u32 m0, s34, {(t % D) * 2048}\nbuffer_load_dwordx4 v6, s[{w}:{w+3}], s37 offen lds")
    L.append(f"s_add_u32 m0, s34, {(t % D) * 2048 + 1024}\nbuffer_load_dwordx4 v7, s[{w}:{w+3}], s37 offen lds")
    L.append(f"buffer_load_dwordx4 {vr(ACT(t,0),4)}, v4, s[56:59], s36 offen")
    L.append(f"buffer_load_dwordx4 {vr(ACT(t,1),4)}, v5, s[56:59], s36 offen")
    return L
def trreads(t):
    return [f"ds_read_b64_tr_b16 {vr(WF2(t,ct)+2*i,2)}, v{8+ct} offset:{(t % D)*2048 + i*512}" for ct in range(2) for i in range(2)]
for t in range(D):
    for l in issue2(t): e(l)
for i in range(64): e(f"v_mov_b32 v{192+i}, 0")
e(f"s_waitcnt vmcnt({4*D})")
for hh in range(7, -1, -1):
    for j in range(3, -1, -1): e(f"v_cvt_pk_bf16_f32 v{KVF(hh)+j}, v{128+8*hh+2*j}, v{128+8*hh+2*j+1}")
e("v_sub_f32 v16, 1.0, v12"); e("v_sub_f32 v18, 1.0, v13")
e(f"s_waitcnt vmcnt({4*(D-1)})")
stamp(2, 3)
for l in trreads(0): e(l)
for t in range(NT):
    if t + 1 < NT:
        e(f"s_waitcnt vmcnt({4 * (min(t + D - 1, NT - 1) - (t + 1))})")
        for l in trreads(t + 1): e(l)
        if t + 1 >= 22:
            for m in range(2): e(f"v_mfma_f32_32x32x16_bf16 {vr(TMP(m),16)}, {vr(KVF(t+1-22),4)}, {vr(ACT(t+1,m),4)}, 0")
        e("s_waitcnt lgkmcnt(4)")
    else:
        e("s_waitcnt lgkmcnt(0)")
    L = issue2(t + D) if t + D < NT else []
    for m in range(2):
        for ct in range(2):
            e(f"v_mfma_f32_32x32x16_bf16 {vr(ACC2(m,ct),16)}, {vr(WF2(t,ct),4)}, {vr(ACT(t,m),4)}, {vr(ACC2(m,ct),16)}")
            if L: e(L.pop(0))
    if 22 <= t + 1 < NT:
        for m in range(2):
            T = TMP(m)
            e(f"v_add_f32 v20, {EPS}, v{T+8}"); e("v_rcp_f32 v20, v20"); e(f"v_mul_f32 v20, v20, v{12+m}")
            for j in range(0, 8, 2): e(f"v_pk_mul_f32 {vr(T+j,2)}, {vr(T+j,2)}, v[20:21] op_sel_hi:[1,0]")
            for j in range(0, 8, 2): e(f"v_cvt_pk_bf16_f32 v{ACT(t+1,m)+j//2}, v{T+j}, v{T+j+1}")
    if t == 21:
        stamp(3, 3)
        for m in range(2):
            for j in range(0, 32, 2): e(f"v_pk_mul_f32 {vr(ACC2(m,0)+j,2)}, {vr(ACC2(m,0)+j,2)}, {vr(16+2*m,2)} op_sel_hi:[1,0]")
stamp(4, 3)
e("s_mul_i32 s16, s24, %d" % (64 * 272)); e(f"s_add_u32 s16, s16, {RED}")
e("v_mul_u32_u24 v20, 272, v14"); e("v_lshl_add_u32 v20, v15, 6, v20"); e("v_add_u32 v20, s16, v20")
for m in range(2):
    for ct in range(2):
        for q in range(4): e(f"ds_write_b128 v20, {vr(ACC2(m,ct)+4*q,4)} offset:{m*32*272 + ct*128 + q*16}")
e("v_lshrrev_b32 v16, 3, v2"); e("v_and_b32 v17, 7, v2")
e("s_mul_i32 s16, s24, %d" % (16 * 272)); e(f"s_add_u32 s16, s16, {RED}")
e("v_mul_u32_u24 v21, 272, v16"); e("v_lshl_add_u32 v21, v17, 5, v21"); e("v_add_u32 v21, s16, v21")
e("v_lshlrev_b32 v22, 10, v16"); e("v_lshl_add_u32 v22, v17, 4, v22")
e("s_lshl_b32 s16, s25, 16"); e("s_lshl_b32 s17, s24, 14"); e("s_add_u32 s16, s16, s17"); e("s_lshl_b32 s17, s26, 7"); e("s_add_u32 s16, s16, s17"); e("s_add_u32 s17, s16, 8192")
e("s_waitcnt lgkmcnt(0)"); e("s_barrier")
for s in range(2):
    for w in range(4):
        for q in range(2): e(f"ds_read_b128 {vr(64+32*s+8*w+4*q,4)}, v21 offset:{w*64*272 + s*8*272 + q*16}")
for s in range(2):
    B = 64 + 32 * s
    e(f"s_waitcnt lgkmcnt({8*(1-s)})")
    for j in range(0, 8, 2):
        e(f"v_pk_add_f32 {vr(B+j,2)}, {vr(B+j,2)}, {vr(B+8+j,2)}"); e(f"v_pk_add_f32 {vr(B+16+j,2)}, {vr(B+16+j,2)}, {vr(B+24+j,2)}")
    for j in range(0, 8, 2): e(f"v_pk_add_f32 {vr(B+j,2)}, {vr(B+j,2)}, {vr(B+16+j,2)}")
    for j in range(0, 8, 2): e(f"v_cvt_pk_bf16_f32 v{B+8+j//2}, v{B+j}, v{B+j+1}")
    e(f"buffer_store_dwordx4 {vr(B+8,4)}, v22, s[52:55], s{16+s} offen")
if STAMP:
    stamp(5, 3); e("s_waitcnt vmcnt(0)"); stamp(6, 3); rstamp(31, 3); stamp_store(3, 1, 48, 2, "s24")
e("K2_end:")
e("s_endpgm")
descriptors(e, [("k0_kernel", 8, 8, 16), ("k1_kernel", 256, 256, 102), ("k2_kernel", 256, 256, 102)])
lines, n = hazard.fix(e.L, verbose=bool(int(OPT.get("v", 0))))
sys.stderr.write(f"inserted {n} nops\n")
open(OPT.get("o", "v1.s"), "w").write("\n".join(lines) + "\n")
```

```python
import sys
from asmlib import *
import hazard
OPT = dict(a.split("=") for a in sys.argv[1:] if "=" in a)
XS = int(OPT.get("xs", 2))
HS = int(OPT.get("hs", 1))
ROT2 = int(OPT.get("rot2", 2))
STAMP = int(OPT.get("stamp", 0))
CPF = int(OPT.get("cpf", 1))
W2PF = [int(c) for c in OPT.get("w2pf", "23456788")]
SLP = int(OPT.get("slp", 1))
PRIO = int(OPT.get("prio", 0))
ACT_BYTES = 64 * 118 * 1024
G_OFF = 0x780000; KV_OFF = 0x790000; CNT_OFF = KV_OFF + 34816; CLR_BYTES = 34816 + 35840; QF = CNT_OFF + 0x6000; ST_OFF = 0x800000
HUGE = 0x7f000000
SLOT = 49152; WOFF = 24576
GATE_LDS = 3 * SLOT; KVS_LDS = GATE_LDS + 1024; SYNC_LDS = KVS_LDS + 8704; G_LDS = SYNC_LDS + 64; LDS_TOTAL = G_LDS + 256
LOG2E = "0x3fb8aa3b"; NLOG2E = "0xbfb8aa3b"; EPS = "0x358637bd"
TMO = 1 << 17
K = NAME + "_kernel"
e = Asm()
header(e, [f"; @launch grid=(256,1,1) block=(512,1,1) lds={LDS_TOTAL}"])
def vr(b, n): return f"v[{b}:{b+n-1}]"
SV = 3
def stamp(idx):
    if STAMP:
        e("s_memtime s[98:99]"); e("s_memrealtime s[100:101]"); e("s_waitcnt lgkmcnt(0)")
        e(f"v_writelane_b32 v{SV}, s98, {idx}"); e(f"v_writelane_b32 v{SV}, s100, {32+idx}"); e("s_nop 0")
sX, sWQKV, sWO, sW1, sW3, sW2, sGW, sOUT, sDBG, sWS = 4, 6, 8, 12, 14, 16, 18, 20, 22, 24
WAVE, RB, COL, GRP, TYP, CGW, SXS, PAR, RB2, CB, SROT, LL = ["s%d" % i for i in range(26, 38)]
rX, rW, rWS, rACT, rW2, rWO, rOUT, rDBG, rM = 56, 60, 64, 68, 72, 76, 80, 84, 88
R = lambda b: f"s[{b}:{b+3}]"
nlab = [0]
def poll(vdst, vaddr, srdb, soff, nl):
    n = nlab[0]; nlab[0] += 1; vexp = 1
    e(f"s_mov_b32 s47, {TMO}")
    if STAMP and nl > 1 and int(OPT.get("pdelay", 0)):
        e(f"P{n}_w:"); e("s_sleep 2"); e("s_memrealtime s[98:99]"); e("s_waitcnt lgkmcnt(0)"); e("s_sub_u32 s98, s98, s94"); e(f"s_cmp_lt_u32 s98, {OPT['pdelay']}"); e(f"s_cbranch_scc1 P{n}_w")
    e(f"s_mov_b32 exec_lo, {(1 << nl) - 1}"); e(f"s_mov_b32 exec_hi, 0")
    e(f"P{n}_loop:")
    pk = OPT.get("pk", "sc1").replace("+", " ")
    if pk == "atomic":
        e(f"v_mov_b32 v{vdst}, 0"); e(f"buffer_atomic_add v{vdst}, v{vaddr}, {R(srdb)}, {soff} offen sc0")
    else:
        e(f"buffer_load_dword v{vdst}, v{vaddr}, {R(srdb)}, {soff} offen {pk}")
    e("s_waitcnt vmcnt(0)")
    e(f"v_cmp_ne_u32 vcc, {vexp}, v{vdst}")
    e("s_cmp_eq_u64 vcc, 0"); e(f"s_cbranch_scc1 P{n}_done")
    e("s_mov_b64 exec, vcc")
    if SLP: e(f"s_sleep {SLP}")
    e("s_sub_u32 s47, s47, 1"); e("s_cmp_lg_u32 s47, 0"); e(f"s_cbranch_scc1 P{n}_loop")
    e(f"P{n}_done:")
    e("s_mov_b64 exec, -1")

kernel_begin(e, K)
if STAMP: e("s_memtime s[92:93]"); e("s_memrealtime s[94:95]")
e("s_load_dwordx16 s[4:19], s[0:1], 0")
e("s_load_dwordx4 s[20:23], s[0:1], 64")
e("s_load_dwordx2 s[24:25], s[0:1], 80")
e("s_cmp_ge_u32 s2, 256"); e("s_cbranch_scc1 L_end")
e("v_lshrrev_b32 v1, 6, v0"); e("v_and_b32 v2, 63, v0")
e("s_and_b32 s38, s2, 7"); e("s_lshr_b32 s39, s2, 3")
e(f"v_readfirstlane_b32 {WAVE}, v1")
e(f"s_lshl_b32 {LL}, s38, 5"); e(f"s_add_u32 {LL}, {LL}, s39")
e("s_mov_b32 s40, 0"); e("s_mov_b32 s41, 6"); e("s_mov_b32 s42, 0"); e("s_mov_b32 s43, 0")
for lim, d, c0, r0 in [(78, 5, 13, 0), (128, 5, 0, 6), (193, 6, 13, 5)]:
    e(f"s_cmp_ge_u32 {LL}, {lim}")
    e(f"s_cselect_b32 s40, {lim}, s40"); e(f"s_cselect_b32 s41, {d}, s41"); e(f"s_cselect_b32 s42, {c0}, s42"); e(f"s_cselect_b32 s43, {r0}, s43")
e(f"s_sub_u32 s40, {LL}, s40")
e("s_cmp_eq_u32 s41, 6"); e("s_movk_i32 s44, 205"); e("s_cselect_b32 s44, 171, s44")
e("s_mul_i32 s44, s44, s40"); e("s_lshr_b32 s44, s44, 10")
e("s_mul_i32 s45, s44, s41"); e("s_sub_u32 s45, s40, s45")
e(f"s_add_u32 {RB}, s43, s45"); e(f"s_add_u32 {COL}, s42, s44")
e(f"s_mul_i32 {GRP}, {COL}, 171"); e(f"s_lshr_b32 {GRP}, {GRP}, 9")
e(f"s_mul_i32 s40, {GRP}, 3"); e(f"s_sub_u32 {TYP}, {COL}, s40")
e(f"s_sub_u32 {CGW}, {COL}, {GRP}"); e(f"s_sub_u32 {CGW}, {CGW}, 1")
e(f"s_add_u32 s40, {RB}, {COL}"); e(f"s_and_b32 {SXS}, s40, {XS-1}")
if HS: e(f"s_bfe_u32 {PAR}, s40, {hex(0x10000 | (XS.bit_length()-1))}")
else: e(f"s_mov_b32 {PAR}, 0")
if STAMP: e(f"v_mov_b32 v{SV}, 0")
e(f"s_cmp_ge_u32 {WAVE}, 4"); e("s_cbranch_scc0 L_cons")

def p2map():
    e("s_and_b32 s38, s2, 7"); e("s_lshr_b32 s39, s2, 6"); e("s_lshl_b32 s38, s38, 2"); e(f"s_add_u32 {RB2}, s38, s39")
    e(f"s_bfe_u32 {CB}, s2, 0x30003")
    if int(OPT.get("cbx", 0)): e(f"s_xor_b32 {CB}, {CB}, {OPT['cbx']}")
def p2traddr(d):
    e("v_lshrrev_b32 v24, 5, v2"); e("v_bfe_u32 v25, v2, 2, 2"); e("v_lshl_add_u32 v24, v24, 3, v25"); e("v_lshrrev_b32 v25, 1, v25")
    e("v_and_b32 v26, 1, v2"); e("v_bfe_u32 v27, v2, 1, 1"); e("v_lshl_or_b32 v26, v26, 2, v27"); e("v_bfe_u32 v27, v2, 4, 1"); e("v_lshl_or_b32 v26, v27, 1, v26")
    e(f"v_lshlrev_b32 v{d}, 7, v24"); e(f"v_lshl_add_u32 v{d}, v25, 6, v{d}"); e(f"v_lshl_add_u32 v{d}, v26, 3, v{d}")

LW = "s48"
e(f"s_sub_u32 {LW}, {WAVE}, 4")
e(f"s_cmp_ge_u32 {LL}, 253"); e("s_cbranch_scc1 L_ld_idle")
e("v_lshrrev_b32 v4, 3, v2"); e("v_and_b32 v5, 7, v2"); e("v_lshrrev_b32 v6, 4, v2"); e("v_xor_b32 v7, v5, v6")
e(f"s_mul_i32 s38, {RB}, 192"); e(f"s_mul_i32 s39, {LW}, 48"); e("s_add_u32 s38, s38, s39"); e("s_lshl_b32 s38, s38, 10")
e(f"s_mul_i32 s39, {PAR}, 24576"); e("s_sub_u32 s40, 24576, s39"); e("s_add_u32 s39, s39, s38"); e("s_add_u32 s40, s40, s38")
e(f"s_lshl_b32 s41, {PAR}, 6")
e("v_lshlrev_b32 v8, 10, v4"); e("v_lshl_add_u32 v8, v7, 4, v8"); e("v_xor_b32 v8, s41, v8"); e("v_xor_b32 v9, 64, v8")
e("v_add_u32 v10, s39, v8"); e("v_add_u32 v11, s39, v9"); e("v_add_u32 v13, s40, v9"); e("v_add_u32 v14, s40, v8")
e("v_add_u32 v11, 8192, v11"); e("v_add_u32 v12, 16384, v10"); e("v_add_u32 v14, 8192, v14"); e("v_add_u32 v15, 16384, v13")
e(f"s_cmp_eq_u32 {TYP}, 0"); e("s_cbranch_scc1 L_ld_qkv")
e(f"s_and_b32 s38, {LW}, 1"); e("s_lshl_b32 s38, s38, 1"); e(f"s_add_u32 s39, s38, {PAR}"); e(f"s_sub_u32 s40, s38, {PAR}"); e("s_add_u32 s40, s40, 1")
e("s_mul_i32 s39, s39, %d" % (16 * 2752)); e("s_mul_i32 s40, s40, %d" % (16 * 2752))
e(f"s_mul_i32 s41, {CGW}, 12"); e("s_movk_i32 s42, 2752"); e(f"v_mov_b32 v23, {HUGE}")
for i in range(3):
    if i: e(f"v_add_u32 v6, {64*i}, v2")
    c = "v6" if i else "v2"
    e(f"v_mul_u32_u24 v7, 5462, {c}"); e("v_lshrrev_b32 v7, 16, v7")
    e("v_mul_u32_u24 v8, 12, v7"); e(f"v_sub_u32 v8, {c}, v8")
    e("v_lshrrev_b32 v9, 2, v7"); e("v_and_b32 v9, 2, v9"); e("v_xor_b32 v8, v8, v9"); e("v_add_u32 v8, s41, v8")
    e("v_cmp_gt_u32 vcc, 172, v8")
    e("v_mul_u32_u24 v7, s42, v7"); e("v_lshl_add_u32 v7, v8, 4, v7")
    e("v_cndmask_b32 v7, v23, v7, vcc")
    e(f"v_add_u32 v{16+i}, s39, v7"); e(f"v_add_u32 v{19+i}, s40, v7")
e("s_mov_b32 s49, %d" % (64 * 2752))
e("s_waitcnt lgkmcnt(0)")
e(f"s_cmp_ge_u32 {LW}, 2"); e(f"s_cselect_b32 s{rW}, s{sW3}, s{sW1}"); e(f"s_cselect_b32 s{rW+1}, s{sW3+1}, s{sW1+1}"); e(f"s_mov_b32 s{rW+2}, {512 * 2752}")
e("s_branch L_ld_go")
e("L_ld_qkv:")
e("v_and_b32 v6, 1, v6"); e("v_lshlrev_b32 v6, 2, v6"); e("v_xor_b32 v6, v5, v6")
e("v_mul_u32_u24 v7, 3072, v4"); e("v_lshl_add_u32 v7, v6, 4, v7")
e(f"s_lshl_b32 s38, {PAR}, 5"); e("v_xor_b32 v7, s38, v7"); e("v_xor_b32 v8, 32, v7")
e(f"s_lshl_b32 s41, {GRP}, 7"); e(f"s_mul_i32 s38, {LW}, 6"); e(f"s_mul_i32 s39, {PAR}, 3"); e("s_sub_u32 s40, 3, s39"); e("s_add_u32 s39, s39, s38"); e("s_add_u32 s40, s40, s38")
for i in range(6):
    e(f"s_add_u32 s42, {'s39' if i < 3 else 's40'}, {i % 3}")
    e("s_lshr_b32 s43, s42, 3"); e("s_lshl_b32 s43, s43, 10"); e("s_and_b32 s42, s42, 7"); e("s_mul_i32 s42, s42, %d" % (8 * 3072))
    e("s_add_u32 s42, s42, s43"); e("s_add_u32 s42, s42, s41")
    e(f"v_add_u32 v{16+i}, s42, v{7 + (i & 1)}")
e("s_mov_b32 s49, %d" % (64 * 3072))
e("s_waitcnt lgkmcnt(0)")
e(f"s_mov_b32 s{rW}, s{sWQKV}"); e(f"s_mov_b32 s{rW+1}, s{sWQKV+1}"); e(f"s_mov_b32 s{rW+2}, {512 * 3072}")
e("L_ld_go:")
e(f"s_mov_b32 s{rW+3}, 0x20000")
srd(e, rX, sX, 0x200000)
e(f"s_mul_i32 s50, {LW}, 6144"); e(f"s_mul_i32 s38, {PAR}, 3072"); e("s_sub_u32 s51, 3072, s38"); e("s_add_u32 s51, s51, s50"); e("s_add_u32 s50, s50, s38")
stamp(1)
def issue1(st, extra=None):
    e(f"s_xor_b32 s38, {SXS}, {st}"); e("s_mul_i32 s39, s38, s49"); e("s_lshl_b32 s38, s38, 7")
    for i in range(6):
        b = "s50" if i < 3 else "s51"
        e(f"s_add_u32 m0, {b}, {(st % 3) * SLOT + (i % 3) * 1024}")
        e(f"buffer_load_dwordx4 v{10+i}, {R(rX)}, s38 offen lds")
        e(f"s_add_u32 m0, {b}, {(st % 3) * SLOT + WOFF + (i % 3) * 1024}")
        e(f"buffer_load_dwordx4 v{16+i}, {R(rW)}, s39 offen lds")
issue1(0)
srd(e, rM, sGW, 1024)
e("v_lshlrev_b32 v4, 4, v2"); e(f"s_mov_b32 m0, {GATE_LDS}")
e(f"buffer_load_dwordx4 v4, {R(rM)}, 0 offen lds")
issue1(1)
def p2setup_h():
    p2map()
    srd(e, rW2, sW2, 1376 * 1024); srd(e, rWO, sWO, 512 * 1024); srd(e, rWS, sWS, 0x10000000); srd(e, rACT, sWS, ACT_BYTES); srd(e, rDBG, sDBG, 256)
    e(f"s_add_u32 {SROT}, {RB2}, {CB}"); e(f"s_and_b32 {SROT}, {SROT}, {ROT2-1}"); e(f"s_mul_i32 {SROT}, {SROT}, {22//ROT2}")
    e("v_lshlrev_b32 v4, 4, v2"); e(f"v_add_u32 v5, {118*1024}, v4")
    e("v_lshrrev_b32 v24, 3, v2"); e("v_and_b32 v25, 7, v2"); e("v_bfe_u32 v26, v2, 4, 1"); e("v_lshlrev_b32 v26, 2, v26"); e("v_xor_b32 v25, v25, v26")
    e(f"s_lshl_b32 s38, {CB}, 7")
    e("v_lshlrev_b32 v6, 10, v24"); e("v_lshl_add_u32 v6, v25, 4, v6"); e("v_add_u32 v6, s38, v6"); e("v_add_u32 v7, 8192, v6")
    p2traddr(28)
    e(f"s_mul_i32 s52, {LW}, 12288")
    e("v_add_u32 v28, s52, v28"); e("v_xor_b32 v29, 64, v28"); e(f"v_add_u32 v8, {SLOT}, v28"); e(f"v_add_u32 v9, {SLOT}, v29")
    e(f"s_mul_i32 s53, {RB2}, {2 * 118 * 1024}")
    e("v_mov_b32 v22, 0")
def ktile(t):
    return f"s_add_u32 s38, {SROT}, {t}\ns_cmp_ge_u32 s38, 22\ns_cselect_b32 s39, 22, 0\ns_sub_u32 s38, s38, s39\ns_lshl_b32 s38, s38, 2\ns_add_u32 s38, s38, {LW}"
def wtile(kind, t, ldsoff):
    if kind == "h": e(ktile(t)); e("s_lshl_b32 s38, s38, 14"); r = rW2
    else: e(f"s_lshl_b32 s38, {LW}, 3"); e(f"s_add_u32 s38, s38, {t}"); e("s_lshl_b32 s38, s38, 14"); r = rWO
    e(f"s_add_u32 m0, s52, {ldsoff}"); e(f"buffer_load_dwordx4 v6, {R(r)}, s38 offen lds")
    e(f"s_add_u32 m0, s52, {ldsoff + 1024}"); e(f"buffer_load_dwordx4 v7, {R(r)}, s38 offen lds")
BATCH = {"A": (2, [("h", t) for t in range(0, 6)]), "B": (0, [("h", t) for t in range(6, 12)]),
         "D": (1, [("o", 6), ("o", 7)] + [("h", t) for t in range(12, 16)]), "C": (2, [("h", t) for t in range(16, 22)]),
         "E": (0, [("o", t) for t in range(0, 6)])}
def batch(n):
    slot, T = BATCH[n]
    for j, (kind, t) in enumerate(T): wtile(kind, t, slot * SLOT + j * 2048)
WR = lambda t, ct: 32 + 8 * t + 4 * ct
def toregs(n):
    slot, T = BATCH[n]
    for j, (kind, t) in enumerate(T):
        for ct in range(2):
            for i in range(2):
                a, off = (8 + ct, (slot - 1) * SLOT) if slot else (28 + ct, 0)
                e(f"ds_read_b64_tr_b16 {vr(WR(t, ct) + 2*i, 2)}, v{a} offset:{off + j*2048 + i*512}")
p2setup_h()
e("s_waitcnt vmcnt(12)"); stamp(2); e("s_barrier")
def w2pf(k, mask=15):
    e("s_lshr_b32 s38, s2, 3"); e("s_lshl_b32 s38, s38, 2"); e(f"s_add_u32 s38, s38, {LW}")
    e("v_lshlrev_b32 v30, 7, v2")
    if k == 0:
        e("s_lshl_b32 s38, s38, 13")
        if mask != 15: e(f"s_bitcmp1_b32 {mask}, {LW}"); e(f"s_cselect_b32 s38, s38, {HUGE}")
        e(f"buffer_load_dword v31, v30, {R(rW2)}, s38 offen")
    else:
        e("s_cmp_ge_u32 s38, 44")
        for i in range(3): e(f"s_cselect_b32 s{rM+i}, s{rWO+i}, s{rW2+i}")
        e("s_movk_i32 s39, 128"); e("s_cselect_b32 s39, -44, s39"); e("s_add_u32 s38, s38, s39"); e("s_lshl_b32 s38, s38, 13")
        if mask != 15: e(f"s_bitcmp1_b32 {mask}, {LW}"); e(f"s_cselect_b32 s38, s38, {HUGE}")
        e(f"buffer_load_dword v31, v30, {R(rM)}, s38 offen")
extra = [sum(1 for k in range(2) if st in W2PF[4*k:4*k+4]) + (1 if st == 7 else 0) for st in range(10)]
def pf(st):
    for k in range(2):
        m = sum(1 << lw for lw in range(4) if W2PF[4*k + lw] == st)
        if m: w2pf(k, m)
pf(2)
issue1(2)
for s in range(8):
    if s <= 6: e(f"s_waitcnt vmcnt({12 + extra[s+2]})")
    if s == 6:
        e("v_cmp_ne_u32 vcc, 1, v23"); e("s_cmp_eq_u64 vcc, 0"); e("s_cbranch_scc1 L_clr_ok")
        poll(23, 22, rDBG, 0, 1)
        e("L_clr_ok:")
    stamp(3 + s)
    e("s_barrier")
    if s == 4: e(f"buffer_load_dword v23, v22, {R(rDBG)}, 0 offen sc1")
    pf(s + 3)
    if s + 3 <= 7: issue1(s + 3)
    if s == 5: batch("A")
    if s == 6: batch("B")
e("L_ld_tail:")
batch("D")
e("s_waitcnt vmcnt(24)"); toregs("A"); e("s_waitcnt lgkmcnt(0)")
batch("C")
e("s_waitcnt vmcnt(24)"); toregs("B"); e("s_waitcnt lgkmcnt(0)")
batch("E")
ACC2 = lambda m, ct: 192 + 16 * (2 * m + ct)
for i in range(0, 64, 2): e(f"v_mov_b64 {vr(192+i, 2)}, 0")
e(f"s_lshl_b32 s38, {LW}, 2"); e(f"s_add_u32 s38, s38, {SYNC_LDS + 16}"); e("v_mov_b32 v24, s38"); e("v_mov_b32 v25, 1")
e(f"s_mul_i32 s38, {RB2}, 171"); e("s_lshr_b32 s38, s38, 9"); e("s_lshl_b32 s38, s38, 11"); e(f"s_add_u32 s54, s38, {CNT_OFF}"); e("v_lshlrev_b32 v30, 7, v2")
e("s_waitcnt vmcnt(0)")
e("ds_write_b32 v24, v25")
stamp(11)
if PRIO: e(f"s_setprio {PRIO}")
def ldswait(addr_expr_setup, tag):
    for l in addr_expr_setup: e(l)
    e(f"s_mov_b32 s47, {TMO*4}")
    e(f"L_{tag}_wait:")
    e("ds_read_b32 v25, v24"); e("s_waitcnt lgkmcnt(0)"); e("v_readfirstlane_b32 s38, v25")
    e("s_cmp_eq_u32 s38, 1"); e(f"s_cbranch_scc1 L_{tag}_ok")
    e("s_sleep 1"); e("s_sub_u32 s47, s47, 1"); e("s_cmp_lg_u32 s47, 0"); e(f"s_cbranch_scc1 L_{tag}_wait")
    e(f"L_{tag}_ok:")
ONEP = int(OPT.get("onep", 1))
if ONEP:
    e(f"s_cmp_eq_u32 {LW}, 0"); e("s_cbranch_scc0 L_h_other")
    poll(23, 30, rWS, "s54", 15)
    e(f"v_mov_b32 v24, {SYNC_LDS + 4}"); e("ds_write_b32 v24, v25")
    e("s_branch L_h_ok")
    e("L_h_other:")
    ldswait([f"v_mov_b32 v24, {SYNC_LDS + 4}"], "h")
else:
    poll(23, 30, rWS, "s54", 15)
stamp(12)
D = 6
ACT = lambda t, m: 128 + 8 * (t % D) + 4 * m
WF2 = lambda t, ct: 176 + 8 * (t & 1) + 4 * ct
def actld(t):
    return [ktile(t) + f"\ns_cmp_ge_u32 s38, 86\ns_cselect_b32 s39, {HUGE}, s53\ns_lshl_b32 s38, s38, 10\ns_add_u32 s38, s38, s39\nbuffer_load_dwordx4 {vr(ACT(t,0),4)}, v4, {R(rACT)}, s38 offen sc1",
            f"buffer_load_dwordx4 {vr(ACT(t,1),4)}, v5, {R(rACT)}, s38 offen sc1"]
def ldsoff_h(t): return (2 + t - 12) * 2048 if t < 16 else SLOT + (t - 16) * 2048
for t in range(D):
    for l in actld(t): e(l)
    if t == 0:
        e("v_lshlrev_b32 v24, 2, v2"); e(f"s_lshl_b32 s40, {RB2}, 8"); e(f"s_add_u32 s40, s40, {G_OFF}")
        e(f"buffer_load_dword v25, v24, {R(rWS)}, s40 offen sc1")
for t in range(22):
    if 12 <= t + 1 < 22:
        for ct in range(2):
            for i in range(2): e(f"ds_read_b64_tr_b16 {vr(WF2(t+1,ct)+2*i,2)}, v{8+ct} offset:{ldsoff_h(t+1) + i*512}")
    vm = 2 * (min(t + D - 1, 21) - t) + (1 if t == 0 else 0)
    if t >= 12: e(f"s_waitcnt vmcnt({vm}) lgkmcnt({4 if t < 21 else 0})")
    else: e(f"s_waitcnt vmcnt({vm})")
    if t == 0: stamp(13)
    L = actld(t + D) if t + D < 22 else []
    for m in range(2):
        for ct in range(2):
            W = WR(t, ct) if t < 12 else WF2(t, ct)
            e(f"v_mfma_f32_32x32x16_bf16 {vr(ACC2(m,ct),16)}, {vr(W,4)}, {vr(ACT(t,m),4)}, {vr(ACC2(m,ct),16)}")
        if L: e(L.pop(0))
    if t == 1:
        e(f"v_add_u32 v24, {G_LDS}, v24"); e("ds_write_b32 v24, v25")
stamp(14)
e(f"s_add_u32 s38, s52, {SLOT + 8192}")
POFF_H = [0, 40960, 45056, 49152]; POFF_O = [0, 4096, 8192, 49152]
def write_partials(offs):
    e("v_and_b32 v24, 31, v2"); e("v_lshrrev_b32 v25, 5, v2"); e("v_bfe_u32 v26, v2, 1, 2"); e("v_and_b32 v27, 1, v2")
    e("v_xor_b32 v27, v27, v25"); e("v_lshl_or_b32 v26, v27, 2, v26")
    e("v_lshlrev_b32 v24, 7, v24"); e("v_lshl_add_u32 v24, v26, 4, v24"); e("v_add_u32 v24, s38, v24")
    for q in range(1, 4): e(f"v_xor_b32 v{24+q}, {16*q}, v24")
    for P in range(4):
        for q in range(4): e(f"ds_write_b128 v{24+q}, {vr(192+16*P+4*q,4)} offset:{offs[P]}")
write_partials(POFF_H)
e("s_branch L_final")
e("L_ld_idle:")
e("s_waitcnt lgkmcnt(0)")
p2setup_h()
e(f"s_mov_b32 s{rM+3}, 0x20000")
for k in range(2): w2pf(k)
e("s_barrier")
batch("A"); batch("B")
poll(23, 22, rDBG, 0, 1)
e("s_barrier")
e("s_branch L_ld_tail")

XF = lambda b, rt: 16 + 48 * b + 4 * rt
WF = lambda b, c: 40 + 48 * b + 4 * c
ACC = lambda rt, c: 112 + 4 * (6 * rt + c)
RH, CH, MT0, SIG = "s48", "s49", "s50", "s51"
e("L_cons:")
if CPF:
    e("s_getpc_b64 s[38:39]"); e("L_pc:")
    e(f"s_sub_u32 s38, s38, L_pc-{K}"); e("s_subb_u32 s39, s39, 0")
    e("v_lshlrev_b32 v4, 7, v0")
    e("s_lshr_b32 s40, s2, 3"); e("s_and_b32 s40, s40, 3"); e(f"s_cmp_eq_u32 s40, {WAVE}"); e("s_cbranch_scc0 L_nopf")
    e(f"v_min_u32 v4, L_end-{K}, v4")
    e("global_load_dword v5, v4, s[38:39]")
    e("L_nopf:")
e(f"v_mov_b32 v4, {SYNC_LDS}"); e("v_lshl_add_u32 v4, v2, 2, v4"); e("v_mov_b32 v6, 0")
e("s_mov_b32 exec_lo, 0xffff"); e("s_mov_b32 exec_hi, 0"); e("ds_write_b32 v4, v6"); e("s_mov_b64 exec, -1")
e(f"s_lshr_b32 {RH}, {WAVE}, 1"); e(f"s_and_b32 {CH}, {WAVE}, 1")
p2map()
e("v_and_b32 v8, 15, v2"); e("v_lshrrev_b32 v9, 4, v2")
e(f"s_mul_i32 s38, {RH}, {96 * 128}")
e("v_lshlrev_b32 v16, 7, v8"); e("v_add_u32 v16, s38, v16")
e("v_lshrrev_b32 v17, 1, v8"); e("v_xor_b32 v17, v17, v9")
e("v_lshl_add_u32 v10, v17, 4, v16"); e("v_xor_b32 v11, 64, v10")
e("v_bfe_u32 v17, v2, 2, 2"); e("v_and_b32 v18, 3, v2"); e("v_lshl_add_u32 v19, v9, 3, v17"); e("v_and_b32 v20, 1, v9")
for i in range(0, 144, 2): e(f"v_mov_b64 {vr(112+i, 2)}, 0")
e(f"s_mul_i32 s38, {RB}, 6"); e(f"s_mul_i32 s39, {RH}, 3"); e(f"s_add_u32 {MT0}, s38, s39")
e("s_waitcnt lgkmcnt(0)")
srd(e, rWS, sWS, 0x10000000); srd(e, rACT, sWS, ACT_BYTES); srd(e, rM, sWS, 0x10000000)
e(f"s_cmp_ge_u32 {LL}, 253"); e("s_cbranch_scc1 L_c_idle")
e(f"s_cmp_eq_u32 {TYP}, 0"); e("s_cbranch_scc1 L_qkv")
e(f"s_lshl_b32 {SIG}, {RB}, 4"); e(f"s_add_u32 {SIG}, {SIG}, {CGW}"); e(f"s_lshl_b32 {SIG}, {SIG}, 7"); e(f"s_add_u32 {SIG}, {SIG}, {CNT_OFF}")
e(f"s_cmp_eq_u32 {CGW}, 14"); e(f"s_cselect_b32 s38, {CH}, 0"); e("s_cmp_eq_u32 s38, 1"); e("s_cbranch_scc1 L_gate")

def mainloop(typ):
    def reads(b, ks):
        X = [f"ds_read_b128 {vr(XF(b, rt), 4)}, v{10+ks} offset:{rt*2048}" for rt in range(6)]
        if typ == "gate":
            return [f"ds_read_b128 {vr(WF(b, 0), 4)}, v12 offset:{ks*64}"] + X
        W = []
        for c in range(6):
            for i in range(2):
                if typ == "w13": a, off = 12 + ((c % 3) & 1), (32*ks + 4*i) * 192 + (c % 3) * 32 + (c // 3) * 12288
                else: a, off = 12 + (c & 1), (32*ks + 4*i) * 128 + (c // 2) * 8192
                W.append(f"ds_read_b64_tr_b16 {vr(WF(b, c) + 2*i, 2)}, v{a} offset:{off}")
        return W[:2] + X + W[2:]
    def mfmas(b):
        M = []
        for c in range(1 if typ == "gate" else 6):
            for k in range(6):
                rt = k if c % 2 == 0 else 5 - k
                A, B = vr(WF(b, c), 4), vr(XF(b, rt), 4)
                if typ == "qkv" and c >= 2: A, B = B, A
                M.append(f"v_mfma_f32_16x16x32_bf16 {vr(ACC(rt, c), 4)}, {A}, {B}, {vr(ACC(rt, c), 4)}")
        return M
    e("s_mov_b32 s52, 0"); e("s_mov_b32 s53, 0")
    if typ == "gate":
        e(f"s_lshl_b32 s55, {SXS}, 7"); e("v_add_u32 v12, s55, v13")
    e("s_barrier")
    stamp(2)
    for r in reads(0, 0): e(r)
    e(".p2align 3")
    e(f"L_loop_{typ}:")
    for ks in range(2):
        Rd = reads(1 - ks, 1 - ks); M = mfmas(ks); X = []
        e("s_waitcnt lgkmcnt(0)")
        if ks == 1:
            e("s_barrier")
            e("v_add_u32 v10, s54, v10")
            if typ == "gate": e("v_add_u32 v12, s55, v13")
            else: e("v_add_u32 v12, s54, v12"); Rd.insert(2, "v_add_u32_e64 v13, s54, v13")
            X = ["v_add_u32_e64 v11, s54, v11"]
        else:
            e("s_add_u32 s53, s53, 1")
            X = [f"s_add_u32 s52, s52, 1\ns_cmp_eq_u32 s52, 3", f"s_mov_b32 s54, {SLOT}", f"s_cselect_b32 s54, {-2*SLOT}, s54", "s_cselect_b32 s52, 0, s52\ns_nop 0"]
            if typ == "gate": X[-1] += f"\ns_and_b32 s55, s53, 7\ns_xor_b32 s55, s55, {SXS}\ns_lshl_b32 s55, s55, 7\ns_nop 0"
        for k, m in enumerate(M):
            e(m)
            if Rd: e(Rd.pop(0))
            elif X: e(X.pop(0))
        for x in Rd + X: e(x)
    e("s_cmp_lt_u32 s53, 8"); e(f"s_cbranch_scc1 L_loop_{typ}")
    e("s_waitcnt lgkmcnt(0)")
    stamp(3)

def swap_store(O, soff, off=0):
    e(f"v_permlane16_swap_b32 v{O}, v{O+2}"); e(f"v_permlane16_swap_b32 v{O+1}, v{O+3}")
    e(f"buffer_store_dwordx4 {vr(O,4)}, v14, {R(rACT)}, {soff} offen{' offset:%d' % off if off else ''} sc1")

e(f"s_mul_i32 s38, {CH}, 96"); e(f"s_add_u32 s38, s38, {WOFF}")
e("v_mul_u32_u24 v19, 192, v19"); e("v_lshl_add_u32 v19, v18, 3, v19"); e("v_add_u32 v19, s38, v19")
e(f"s_cmp_eq_u32 {CH}, 0"); e("s_cselect_b32 s38, 32, -32")
e("v_mul_i32_i24 v20, s38, v20"); e("v_add_u32 v12, v19, v20"); e("v_sub_u32 v13, v19, v20")
mainloop("w13")
e("v_lshlrev_b32 v14, 4, v2")
e(f"s_mul_i32 s38, {CGW}, 6"); e(f"s_mul_i32 s39, {CH}, 3"); e("s_add_u32 s38, s38, s39")
e(f"s_mul_i32 s39, {MT0}, 118"); e("s_add_u32 s39, s39, s38"); e("s_lshl_b32 s39, s39, 10")
e(f"s_mov_b32 s44, {NLOG2E}"); e(f"s_mov_b32 s45, {NLOG2E}")
n = 0
for u in range(3):
    e(f"s_add_u32 s40, s39, {u*1024}"); e(f"s_cmp_lt_u32 s38, {86-u}"); e(f"s_cselect_b32 s40, s40, {HUGE}")
    for pr in range(3):
        T = 16 + 8 * (n & 1); O = 32 + 4 * (n & 3); n += 1
        G = [ACC(2*pr + j // 2, u) + 2 * (j & 1) for j in range(4)]; U = [g + 12 for g in G]
        for j in range(4): e(f"v_pk_mul_f32 {vr(T+2*j,2)}, {vr(G[j],2)}, s[44:45]")
        for j in range(8): e(f"v_exp_f32 v{T+j}, v{T+j}")
        for j in range(4): e(f"v_pk_mul_f32 {vr(G[j],2)}, {vr(G[j],2)}, {vr(U[j],2)}")
        for j in range(4): e(f"v_pk_add_f32 {vr(T+2*j,2)}, {vr(T+2*j,2)}, 1.0 op_sel_hi:[1,0]")
        for j in range(8): e(f"v_rcp_f32 v{T+j}, v{T+j}")
        e(f"s_add_u32 s41, s40, {pr*118*1024 if pr else '0x0'}")
        for j in range(4): e(f"v_pk_mul_f32 {vr(G[j],2)}, {vr(G[j],2)}, {vr(T+2*j,2)}")
        for j in range(4): e(f"v_cvt_pk_bf16_f32 v{O+j}, v{G[j]}, v{G[j]+1}")
        swap_store(O, "s41")
e("s_branch L_signal")

e("L_gate:")
e(f"v_lshlrev_b32 v13, 4, v9"); e(f"v_add_u32 v13, {GATE_LDS}, v13")
mainloop("gate")
e("v_lshlrev_b32 v14, 2, v2")
e(f"s_add_u32 s40, s{sWS}, {G_OFF}"); e(f"s_addc_u32 s41, s{sWS+1}, 0"); e("s_mov_b32 s42, 8192"); e("s_mov_b32 s43, 0x20000")
e(f"s_lshl_b32 s39, {MT0}, 7")
e("s_mov_b32 exec_lo, 0xffff"); e("s_mov_b32 exec_hi, 0")
for rt in range(6):
    e(f"v_mul_f32 v16, {NLOG2E}, v{ACC(rt, 0)}"); e("v_exp_f32 v16, v16"); e("v_add_f32 v16, 1.0, v16"); e(f"v_rcp_f32 v{20+rt}, v16")
    e(f"buffer_store_dword v{20+rt}, v14, s[40:43], s39 offen offset:{rt*64} sc1")
e("s_mov_b64 exec, -1")
e("s_branch L_signal")

e("L_c_idle:")
e("s_barrier")
e(f"s_cmp_eq_u32 {LL}, 253"); e("s_cbranch_scc0 L_c_idle2")
e(f"s_add_u32 s40, s{sWS}, {KV_OFF}"); e(f"s_addc_u32 s41, s{sWS+1}, 0"); e(f"s_mov_b32 s42, {CLR_BYTES}"); e("s_mov_b32 s43, 0x20000")
e("v_lshlrev_b32 v14, 4, v0")
for i in range(18):
    e(f"s_mov_b32 s38, {4096*i}"); e(f"buffer_store_dwordx4 v[112:115], v14, s[40:43], s38 offen sc1")
srd(e, rM, sDBG, 256)
e("s_waitcnt vmcnt(0)")
e(f"v_mov_b32 v16, {SYNC_LDS}"); e("v_mov_b32 v17, 1")
e("s_mov_b32 exec_lo, 1"); e("s_mov_b32 exec_hi, 0")
e("ds_add_rtn_u32 v18, v16, v17"); e("s_waitcnt lgkmcnt(0)"); e("v_readfirstlane_b32 s38, v18")
e("s_cmp_eq_u32 s38, 3"); e("s_cbranch_scc0 L_c_idle1")
e(f"buffer_store_dword v17, off, {R(rM)}, 0 sc1")
e("L_c_idle1:")
e("s_mov_b64 exec, -1")
e("L_c_idle2:")
e("s_waitcnt vmcnt(0)")
e("s_barrier")
e("s_branch L_opart")

e("L_qkv:")
e(f"s_mul_i32 {SIG}, {GRP}, 11"); e(f"s_add_u32 {SIG}, {SIG}, {RB}"); e(f"s_lshl_b32 {SIG}, {SIG}, 7"); e(f"s_add_u32 {SIG}, {SIG}, {QF}")
e("v_and_b32 v17, 2, v17"); e("v_or_b32 v17, v17, v20"); e(f"s_lshl_b32 s38, {CH}, 1"); e("v_xor_b32 v17, s38, v17")
e("v_lshlrev_b32 v12, 7, v19"); e("v_lshl_add_u32 v12, v17, 5, v12"); e("v_lshl_add_u32 v12, v18, 3, v12"); e(f"v_add_u32 v12, {WOFF}, v12"); e("v_xor_b32 v13, 32, v12")
mainloop("qkv")
e(f"s_mov_b32 s44, {LOG2E}"); e(f"s_mov_b32 s45, {LOG2E}"); e(f"s_mov_b32 s42, {EPS}"); e(f"s_mov_b32 s43, {EPS}")
nphi = [0]
def phi(pr, c, O):
    T = 16 + 8 * (nphi[0] & 1); nphi[0] += 1
    G = [ACC(2*pr + j // 2, c) + 2 * (j & 1) for j in range(4)]
    for j in range(4): e(f"v_pk_mul_f32 {vr(T+2*j,2)}, {vr(G[j],2)}, s[44:45]")
    for j in range(8): e(f"v_exp_f32 v{T+j}, v{T+j} clamp")
    for j in range(8): e(f"v_max_f32 v{G[j//2]+(j&1)}, 0, v{G[j//2]+(j&1)}")
    for j in range(4): e(f"v_pk_add_f32 {vr(G[j],2)}, {vr(G[j],2)}, {vr(T+2*j,2)}")
    for j in range(4): e(f"v_pk_add_f32 {vr(G[j],2)}, {vr(G[j],2)}, s[42:43]")
    for j in range(4): e(f"v_cvt_pk_bf16_f32 v{O+j}, v{G[j]}, v{G[j]+1}")
D2, D3, ONE = 64, 72, 80
for i in range(4): e(f"v_mov_b32 v{ONE+i}, 0x3f803f80")
for pr in range(3):
    if pr == 1:
        e(f"s_cmp_ge_u32 {MT0}, 63"); e("s_cbranch_scc1 L_kv_done")
    for u in range(2):
        PK = 32 + 8 * u; VV = 36 + 8 * u
        phi(pr, 2 + u, PK)
        for j in range(4):
            g = ACC(2*pr + j // 2, 4 + u) + 2 * (j & 1)
            e(f"v_cvt_pk_bf16_f32 v{VV+j}, v{g}, v{g+1}")
        e(f"v_mfma_f32_16x16x32_bf16 {vr(D3+4*u,4)}, {vr(PK,4)}, {vr(ONE,4)}, {'0' if pr == 0 else vr(D3+4*u,4)}")
        e(f"v_mfma_f32_16x16x32_bf16 {vr(D2+4*u,4)}, {vr(PK,4)}, {vr(VV,4)}, {'0' if pr == 0 else vr(D2+4*u,4)}")
e("L_kv_done:")
e(f"s_mul_i32 s38, {WAVE}, 2176"); e(f"s_add_u32 s38, s38, {KVS_LDS}")
e("v_and_b32 v48, 1, v9"); e("v_lshrrev_b32 v49, 1, v9"); e("v_mul_u32_u24 v48, 544, v48"); e("v_mul_u32_u24 v49, 272, v49"); e("v_add3_u32 v48, v48, v49, s38")
e("v_and_b32 v49, 3, v2"); e("v_bfe_u32 v50, v2, 2, 1"); e("v_bfe_u32 v51, v2, 3, 1"); e("v_lshl_or_b32 v49, v50, 3, v49"); e("v_lshl_or_b32 v49, v51, 2, v49")
e("v_lshl_add_u32 v48, v49, 4, v48")
e("v_lshlrev_b32 v15, 2, v2"); e("v_add_u32 v49, s38, v15")
for u in range(2): e(f"ds_write_b128 v48, {vr(D2+4*u,4)} offset:{1088*u}")
e("s_mov_b32 exec_lo, 0x00010001"); e("s_mov_b32 exec_hi, 0x00010001")
for u in range(2): e(f"ds_write_b128 v48, {vr(D3+4*u,4)} offset:{1088*u+256}")
e("s_mov_b64 exec, -1")
e(f"s_mul_i32 s40, {GRP}, 4352"); e(f"s_mul_i32 s41, {CH}, 2176"); e("s_add_u32 s40, s40, s41"); e(f"s_add_u32 s40, s40, {KV_OFF}")
e("s_waitcnt lgkmcnt(0)")
for i in range(9): e(f"ds_read_b32 v{52+i}, v49 offset:{256*i}")
e("v_lshlrev_b32 v14, 4, v2")
e(f"s_lshl_b32 s38, {GRP}, 2"); e(f"s_lshl_b32 s39, {CH}, 1"); e("s_add_u32 s38, s38, s39"); e("s_add_u32 s38, s38, 86")
e(f"s_mul_i32 s39, {MT0}, 118"); e("s_add_u32 s39, s39, s38"); e("s_lshl_b32 s39, s39, 10")
e("s_waitcnt lgkmcnt(0)")
for i in range(8): e(f"buffer_atomic_add_f32 v{52+i}, v15, {R(rWS)}, s40 offen offset:{256*i}")
e("s_mov_b32 exec_hi, 0")
e(f"buffer_atomic_add_f32 v60, v15, {R(rWS)}, s40 offen offset:2048")
e("s_mov_b64 exec, -1")
n = 0
for pr in range(3):
    e(f"s_add_u32 s41, s39, {pr*118*1024 if pr else '0x0'}")
    for u in range(2):
        O = 32 + 4 * (n & 3); n += 1
        phi(pr, u, O)
        swap_store(O, "s41", 1024 * u)

e("L_signal:")
stamp(4)
e(f"v_mov_b32 v16, {SYNC_LDS}"); e("v_mov_b32 v17, 1")
e("s_waitcnt vmcnt(0)")
stamp(5)
e("s_mov_b32 exec_lo, 1"); e("s_mov_b32 exec_hi, 0")
e("ds_add_rtn_u32 v18, v16, v17"); e("s_waitcnt lgkmcnt(0)"); e("v_readfirstlane_b32 s38, v18")
e("s_cmp_eq_u32 s38, 3"); e("s_cbranch_scc0 L_nosig")
e(f"buffer_store_dword v17, off, {R(rM)}, {SIG} sc1")
e("L_nosig:")
e("s_mov_b64 exec, -1")

e("L_opart:")
PQ = lambda hh, m: 64 + 8 * hh + 4 * m
TMP = lambda m: 128 + 16 * m
KVF = lambda hh: 160 + 4 * hh
WFO = lambda t, ct: 32 + 8 * (t & 1) + 4 * ct
p2traddr(8)
e(f"s_mul_i32 s52, {WAVE}, 12288"); e("v_add_u32 v8, s52, v8"); e("v_xor_b32 v9, 64, v8")
e("v_lshlrev_b32 v4, 4, v2"); e(f"v_add_u32 v5, {118*1024}, v4")
e("v_and_b32 v24, 31, v2"); e("v_min_u32 v24, 16, v24"); e("v_lshrrev_b32 v25, 5, v2"); e("v_mul_u32_u24 v10, 272, v25"); e("v_lshl_add_u32 v10, v24, 4, v10")
e("v_lshlrev_b32 v11, 7, v2")
e(f"s_mul_i32 s54, {WAVE}, {22*128}"); e(f"s_add_u32 s54, s54, {QF}")
e(f"s_mul_i32 s40, {WAVE}, {8 * 1088}"); e(f"s_add_u32 s40, s40, {KV_OFF}")
e(f"s_mul_i32 s53, {RB2}, {2 * 118}"); e(f"s_lshl_b32 s41, {WAVE}, 3"); e("s_add_u32 s53, s53, s41"); e("s_add_u32 s53, s53, 86"); e("s_lshl_b32 s53, s53, 10")
for i in range(0, 64, 2): e(f"v_mov_b64 {vr(192+i, 2)}, 0")
if ONEP and int(OPT.get("qafter", 1)): ldswait([f"v_mov_b32 v24, {SYNC_LDS + 4}"], "h2")
poll(23, 11, rWS, "s54", 22)
stamp(6)
for hh in range(8):
    if hh and hh % 3 == 0: e("s_add_u32 s40, s40, %d" % (3 * 1088))
    for p in range(2):
        e(f"buffer_load_dwordx4 {vr(128+8*hh+4*p,4)}, v10, {R(rWS)}, s40 offen offset:{(hh%3)*1088 + p*544} sc1")
for hh in range(8):
    if hh == 4: e("s_add_u32 s53, s53, 4096")
    for m in range(2):
        e(f"buffer_load_dwordx4 {vr(PQ(hh,m),4)}, v{4+m}, {R(rACT)}, s53 offen offset:{(hh%4)*1024} sc1")
e(f"s_lshl_b32 s38, {WAVE}, 2"); e(f"s_add_u32 s38, s38, {SYNC_LDS + 16}"); e("v_mov_b32 v24, s38")
e(f"s_mov_b32 s47, {TMO*4}")
e("L_wo_wait:")
e("ds_read_b32 v25, v24"); e("s_waitcnt lgkmcnt(0)"); e("v_readfirstlane_b32 s38, v25")
e("s_cmp_eq_u32 s38, 1"); e("s_cbranch_scc1 L_wo_ok")
e("s_sleep 1"); e("s_sub_u32 s47, s47, 1"); e("s_cmp_lg_u32 s47, 0"); e("s_cbranch_scc1 L_wo_wait")
e("L_wo_ok:")
def ldsoff_o(t): return t * 2048 if t < 6 else SLOT + (t - 6) * 2048
def trread_o(t):
    for ct in range(2):
        for i in range(2): e(f"ds_read_b64_tr_b16 {vr(WFO(t,ct)+2*i,2)}, v{8+ct} offset:{ldsoff_o(t) + i*512}")
trread_o(0)
e("s_waitcnt vmcnt(16)")
stamp(7)
for hh in range(7, -1, -1):
    for j in range(3, -1, -1): e(f"v_cvt_pk_bf16_f32 v{KVF(hh)+j}, v{128+8*hh+2*j}, v{128+8*hh+2*j+1}")
def numden(t):
    e(f"s_waitcnt vmcnt({14 - 2*t})")
    for m in range(2): e(f"v_mfma_f32_32x32x16_bf16 {vr(TMP(m),16)}, {vr(KVF(t),4)}, {vr(PQ(t,m),4)}, 0")
def norm(t):
    for m in range(2):
        T = TMP(m)
        e(f"v_add_f32 v{20+2*m}, {EPS}, v{T+8}"); e(f"v_rcp_f32 v{20+2*m}, v{20+2*m}")
        for j in range(0, 8, 2): e(f"v_pk_mul_f32 {vr(T+j,2)}, {vr(T+j,2)}, {vr(20+2*m,2)} op_sel_hi:[1,0]")
        for j in range(0, 8, 2): e(f"v_cvt_pk_bf16_f32 v{PQ(t,m)+j//2}, v{T+j}, v{T+j+1}")
numden(0); norm(0)
for t in range(8):
    if t + 1 < 8:
        trread_o(t + 1); numden(t + 1); e("s_waitcnt lgkmcnt(4)")
    else: e("s_waitcnt lgkmcnt(0)")
    for m in range(2):
        for ct in range(2):
            e(f"v_mfma_f32_32x32x16_bf16 {vr(ACC2(m,ct),16)}, {vr(WFO(t,ct),4)}, {vr(PQ(t,m),4)}, {vr(ACC2(m,ct),16)}")
    if t + 1 < 8: norm(t + 1)
stamp(14)
e("s_mov_b32 s38, s52")
write_partials(POFF_O)

e("L_final:")
srd(e, rOUT, sOUT, 0x200000)
e("v_lshrrev_b32 v16, 3, v2"); e("v_and_b32 v17, 7, v2")
e(f"s_cmp_ge_u32 {WAVE}, 4")
hb = [SLOT + 8192 + o for o in POFF_H]
e(f"s_mov_b32 s40, {hb[0]}"); e(f"s_cselect_b32 s40, {hb[2]}, s40"); e(f"s_mov_b32 s41, {hb[1]-hb[0]}"); e(f"s_cselect_b32 s41, {hb[3]-hb[2]}, s41")
e(f"s_mov_b32 s42, {POFF_O[0]}"); e(f"s_cselect_b32 s42, {POFF_O[2]}, s42"); e(f"s_mov_b32 s43, {POFF_O[1]-POFF_O[0]}"); e(f"s_cselect_b32 s43, {POFF_O[3]-POFF_O[2]}, s43")
e(f"s_and_b32 s38, {WAVE}, 3"); e("s_lshl_b32 s38, s38, 10"); e("s_add_u32 s40, s40, s38"); e("s_add_u32 s42, s42, s38")
e("v_lshrrev_b32 v18, 1, v16"); e("v_and_b32 v19, 1, v16"); e("v_lshl_or_b32 v18, v19, 2, v18")
e("v_and_b32 v19, 3, v17"); e("v_lshlrev_b32 v19, 1, v19"); e("v_xor_b32 v18, v18, v19")
e("v_lshlrev_b32 v18, 4, v18"); e("v_lshl_add_u32 v18, v16, 7, v18")
e("v_lshrrev_b32 v19, 2, v17")
e("v_mul_u32_u24 v20, s41, v19"); e("v_add3_u32 v20, v20, v18, s40"); e("v_xor_b32 v21, 16, v20")
e("v_mul_u32_u24 v22, s43, v19"); e("v_add3_u32 v22, v22, v18, s42"); e("v_xor_b32 v23, 16, v22")
e(f"s_lshl_b32 s38, {WAVE}, 5"); e(f"s_add_u32 s38, s38, {G_LDS}"); e("v_lshl_add_u32 v19, v16, 2, s38")
e("v_lshlrev_b32 v16, 10, v16"); e("v_lshl_add_u32 v16, v17, 4, v16")
e(f"s_lshl_b32 s38, {RB2}, 16"); e(f"s_lshl_b32 s39, {WAVE}, 13"); e("s_add_u32 s38, s38, s39"); e(f"s_lshl_b32 s39, {CB}, 7"); e("s_add_u32 s38, s38, s39")
e("s_waitcnt lgkmcnt(0)")
stamp(15)
e("s_barrier")
stamp(16)
e("ds_read_b32 v28, v19")
for ty in range(2):
    for w in range(4):
        for s in range(2): e(f"ds_read_b128 {vr(64+32*ty+8*w+4*s,4)}, v{22-2*ty+s} offset:{w*12288}")
for ty in range(2):
    B = 64 + 32 * ty
    e(f"s_waitcnt lgkmcnt({8*(1-ty)})")
    if ty == 0: e("v_sub_f32 v30, 1.0, v28")
    for j in range(0, 8, 2):
        e(f"v_pk_add_f32 {vr(B+j,2)}, {vr(B+j,2)}, {vr(B+8+j,2)}"); e(f"v_pk_add_f32 {vr(B+16+j,2)}, {vr(B+16+j,2)}, {vr(B+24+j,2)}")
    for j in range(0, 8, 2): e(f"v_pk_add_f32 {vr(B+j,2)}, {vr(B+j,2)}, {vr(B+16+j,2)}")
    if ty == 0:
        for j in range(0, 8, 2): e(f"v_pk_mul_f32 {vr(B+j,2)}, {vr(B+j,2)}, v[28:29] op_sel_hi:[1,0]")
for j in range(0, 8, 2): e(f"v_pk_fma_f32 {vr(64+j,2)}, {vr(96+j,2)}, v[30:31], {vr(64+j,2)} op_sel_hi:[1,0,1]")
for j in range(0, 8, 2): e(f"v_cvt_pk_bf16_f32 v{72+j//2}, v{64+j}, v{65+j}")
e(f"buffer_store_dwordx4 v[72:75], v16, {R(rOUT)}, s38 offen")
if STAMP:
    stamp(17); e("s_waitcnt vmcnt(0)"); stamp(18)
    e(f"v_writelane_b32 v{SV}, s92, 0"); e(f"v_writelane_b32 v{SV}, s94, 32")
    e(f"s_lshl_b32 s97, s2, 3"); e(f"s_add_u32 s97, s97, {WAVE}"); e("s_lshl_b32 s97, s97, 8"); e(f"s_add_u32 s97, s97, {ST_OFF}")
    e("v_lshlrev_b32 v1, 2, v2")
    e(f"buffer_store_dword v{SV}, v1, {R(rWS)}, s97 offen")
e("L_end:")
e("s_endpgm")
descriptors(e, [(K, 256, 256, 102)])
lines, n = hazard.fix(e.L, verbose=bool(int(OPT.get("v", 0))))
sys.stderr.write(f"inserted {n} nops\n")
open(OPT.get("o", "v2.s"), "w").write("\n".join(lines) + "\n")
```

```python
import sys
from asmlib import *
import hazard, align
OPT = dict(a.split("=") for a in sys.argv[1:] if "=" in a)
def opt(k, d): return int(OPT.get(k, d))
XS = opt("xs", 2); HS = opt("hs", 1); ROT2 = opt("rot2", 2); OC = opt("oc", 2)
STAMP = opt("stamp", 0); CPF = opt("cpf", 1); SLP = opt("slp", 1)
PFS = opt("pfs", 7)
THR = opt("thr", 0)
PRIO_O = opt("prioo", 1); PRIO_H = opt("prioh", 0); PRIO_C = opt("prioc", 0)
WPF = opt("wpf", 1); RELE = opt("rele", 0)
QX = opt("qx", 1); D = opt("d", 4); OUTC = OPT.get("outc", "").replace("+", " ")
ACT_BYTES = 64 * 118 * 1024
G_OFF = 0x780000; KV_OFF = 0x790000; Z_OFF = KV_OFF + 32768; CNT_OFF = KV_OFF + 34816; QF = CNT_OFF + 0x8000
CLR_BYTES = 34816 + 32768 + 512; ST_OFF = 0x800000
HUGE = 0x7f000000
SLOT = 49152; WOFF = 24576
GATE_LDS = 3 * SLOT; KVS_LDS = GATE_LDS + 1024; SYNC_LDS = KVS_LDS + 8192; LDS_TOTAL = SYNC_LDS + 64
SY_SIG, SY_H, SY_REL, SY_H0, SY_UF, SY_Q, SY_KV = 0, 4, 8, 12, 16, 32, 48
OOB = 0x08000000
CLAMP = "0x42200000"
LOG2E = "0x3fb8aa3b"; NLOG2E = "0xbfb8aa3b"; EPS = "0x358637bd"
TMO = 1 << 17
K = NAME + "_kernel"
e = Asm()
header(e, [f"; @launch grid=(256,1,1) block=(512,1,1) lds={LDS_TOTAL}"])
def vr(b, n): return f"v[{b}:{b+n-1}]"
SV = 3
def stamp(idx):
    if STAMP == 1 or (STAMP == 2 and idx == 18):
        e("s_memtime s[98:99]"); e("s_memrealtime s[100:101]"); e("s_waitcnt lgkmcnt(0)")
        e(f"v_writelane_b32 v{SV}, s98, {idx}"); e(f"v_writelane_b32 v{SV}, s100, {32+idx}")
sX, sWQKV, sWO, sW1, sW3, sW2, sGW, sOUT, sDBG, sWS = 4, 6, 8, 12, 14, 16, 18, 20, 22, 24
WAVE, RB, COL, GRP, TYP, CGW, SXS, PAR, RB2, CB, SROT, LL = ["s%d" % i for i in range(26, 38)]
rX, rW, rWS, rACT, rW2, rWO, rOUT, rDBG, rM = 56, 60, 64, 68, 72, 76, 80, 84, 88
TX = "s55"
R = lambda b: f"s[{b}:{b+3}]"
nlab = [0]
def poll(vdst, vaddr, srdb, soff, nl, first=False):
    n = nlab[0]; nlab[0] += 1
    e(f"s_mov_b32 s47, {TMO}")
    e(f"s_mov_b32 exec_lo, {(1 << nl) - 1}"); e(f"s_mov_b32 exec_hi, 0")
    if first: e(f"s_branch P{n}_chk")
    e(f"P{n}_loop:")
    e(f"buffer_load_dword v{vdst}, v{vaddr}, {R(srdb)}, {soff} offen sc1")
    e(f"P{n}_chk:")
    e("s_waitcnt vmcnt(0)")
    e(f"v_cmp_ne_u32 vcc, 1, v{vdst}")
    e("s_cmp_eq_u64 vcc, 0"); e(f"s_cbranch_scc1 P{n}_done")
    e("s_mov_b64 exec, vcc")
    if SLP: e(f"s_sleep {SLP}")
    e("s_sub_u32 s47, s47, 1"); e("s_cmp_lg_u32 s47, 0"); e(f"s_cbranch_scc1 P{n}_loop")
    e(f"P{n}_done:")
    e("s_mov_b64 exec, -1")
def ldswait(va, off, vd, val, tag):
    e(f"s_mov_b32 s47, {TMO*4}")
    e(f"L_{tag}_wait:")
    e(f"ds_read_b32 v{vd}, v{va} offset:{off}"); e("s_waitcnt lgkmcnt(0)"); e(f"v_readfirstlane_b32 s38, v{vd}")
    e(f"s_cmp_ge_u32 s38, {val}"); e(f"s_cbranch_scc1 L_{tag}_ok")
    e("s_sleep 1"); e("s_sub_u32 s47, s47, 1"); e("s_cmp_lg_u32 s47, 0"); e(f"s_cbranch_scc1 L_{tag}_wait")
    e(f"L_{tag}_ok:")

kernel_begin(e, K)
if STAMP: e("s_memtime s[92:93]"); e("s_memrealtime s[94:95]")
e("s_load_dwordx16 s[4:19], s[0:1], 0")
e("s_load_dwordx4 s[20:23], s[0:1], 64")
e("s_load_dwordx2 s[24:25], s[0:1], 80")
e("v_lshrrev_b32 v1, 6, v0"); e("v_and_b32 v2, 63, v0")
e("s_cmp_ge_u32 s2, 256"); e("s_cbranch_scc1 L_end")
e(f"v_readfirstlane_b32 {WAVE}, v1")
e("s_and_b32 s38, s2, 7"); e("s_lshr_b32 s39, s2, 3")
if CPF:
    e(f"s_cmp_eq_u32 {WAVE}, 0"); e("s_cbranch_scc0 L_nopf")
    e("s_getpc_b64 s[40:41]"); e("L_pc:")
    e("s_and_b32 s42, s39, 3"); e("s_lshl_b32 s42, s42, 13"); e("v_lshl_add_u32 v4, v2, 7, s42")
    e("v_min_u32 v4, L_end-L_pc, v4")
    e("global_load_dword v5, v4, s[40:41]")
    e("L_nopf:")
e(f"s_lshl_b32 {LL}, s38, 5"); e(f"s_add_u32 {LL}, {LL}, s39")
e(f"s_and_b32 s40, {LL}, 127"); e(f"s_cmp_ge_u32 {LL}, 128"); e("s_cselect_b32 s41, 10, 13"); e("s_mul_i32 s42, s41, 6")
e("s_cmp_ge_u32 s40, s42")
e("s_cselect_b32 s41, s41, 0"); e("s_cselect_b32 s42, s42, 0"); e("s_cselect_b32 s43, 5, 6"); e("s_movk_i32 s44, 171"); e("s_cselect_b32 s44, 205, s44")
e("s_sub_u32 s40, s40, s42"); e("s_mul_i32 s44, s44, s40"); e("s_lshr_b32 s44, s44, 10")
e("s_mul_i32 s43, s43, s44"); e(f"s_sub_u32 {RB}, s40, s43"); e(f"s_add_u32 {COL}, s41, s44")
e(f"s_sub_u32 s40, 10, {RB}"); e(f"s_sub_u32 s41, 22, {COL}"); e(f"s_cmp_ge_u32 {LL}, 128")
e(f"s_cselect_b32 {RB}, s40, {RB}"); e(f"s_cselect_b32 {COL}, s41, {COL}")
e(f"s_mul_i32 {GRP}, {COL}, 171"); e(f"s_lshr_b32 {GRP}, {GRP}, 9")
e(f"s_mul_i32 s40, {GRP}, 3"); e(f"s_sub_u32 {TYP}, {COL}, s40")
e(f"s_sub_u32 {CGW}, {COL}, {GRP}"); e(f"s_sub_u32 {CGW}, {CGW}, 1")
e(f"s_add_u32 s40, {RB}, {COL}"); e(f"s_and_b32 {SXS}, s40, {XS-1}")
if HS: e(f"s_bfe_u32 {PAR}, s40, {hex(0x10000 | (XS.bit_length()-1))}")
else: e(f"s_mov_b32 {PAR}, 0")
XO = opt("xo", 2)
if XO:
    tab = sum((((c if c < 4 else (7 - c) ^ (XO >> 1)) * 2) & opt("xom", 6)) << (4 * c) for c in range(8))
    e("s_lshl_b32 s38, s38, 2"); e(f"s_lshr_b32 s38, {hex(tab)}, s38"); e("s_and_b32 s38, s38, 6"); e(f"s_or_b32 {SXS}, {SXS}, s38")
if STAMP: e(f"v_mov_b32 v{SV}, 0")
e(f"s_cmp_ge_u32 {WAVE}, 4"); e("s_cbranch_scc0 L_cons")

def p2map():
    e("s_and_b32 s38, s2, 7"); e("s_lshr_b32 s39, s2, 6"); e("s_lshl_b32 s38, s38, 2"); e(f"s_add_u32 {RB2}, s38, s39")
    e(f"s_bfe_u32 {CB}, s2, 0x30003")
def p2tx():
    e(f"s_add_u32 {TX}, {RB2}, {CB if opt('ocb', 1) else 0}"); e(f"s_and_b32 {TX}, {TX}, {OC-1}"); e(f"s_mul_i32 {TX}, {TX}, {8//OC}")
def p2traddr(d):
    e("v_lshrrev_b32 v24, 5, v2"); e("v_bfe_u32 v25, v2, 2, 2"); e("v_lshl_add_u32 v24, v24, 3, v25"); e("v_lshrrev_b32 v25, 1, v25")
    e("v_and_b32 v26, 1, v2"); e("v_bfe_u32 v27, v2, 1, 1"); e("v_lshl_or_b32 v26, v26, 2, v27"); e("v_bfe_u32 v27, v2, 4, 1"); e("v_lshl_or_b32 v26, v27, 1, v26")
    e(f"v_lshlrev_b32 v{d}, 7, v24"); e(f"v_lshl_add_u32 v{d}, v25, 6, v{d}"); e(f"v_lshl_add_u32 v{d}, v26, 3, v{d}")

POFF_H = [0, 40960, 45056, 49152]; POFF_O = [0, 4096, 8192, 49152]
def partial_addr(d):
    e("v_and_b32 v24, 31, v2"); e("v_lshrrev_b32 v25, 5, v2"); e("v_bfe_u32 v26, v2, 1, 2"); e("v_and_b32 v27, 1, v2")
    e("v_xor_b32 v27, v27, v25"); e("v_lshl_or_b32 v26, v27, 2, v26")
    e("v_lshlrev_b32 v24, 7, v24"); e("v_lshl_add_u32 v24, v26, 4, v24"); e(f"v_add_u32 v{d}, s38, v24")
    for q in range(1, 4): e(f"v_xor_b32 v{d+q}, {16*q}, v{d}")
def partial_writes(d, offs, Ps):
    return [f"ds_write_b128 v{d+q}, {vr(192+16*P+4*q,4)} offset:{offs[P]}" for P in Ps for q in range(4)]
LW = "s48"
e(f"s_sub_u32 {LW}, {WAVE}, 4")
PRIO_L = opt("priol", 0)
if PRIO_L: e(f"s_setprio {PRIO_L}")
e(f"s_cmp_ge_u32 {LL}, 253"); e("s_cbranch_scc1 L_ld_idle")
e("v_lshrrev_b32 v4, 3, v2"); e("v_and_b32 v5, 7, v2"); e("v_lshrrev_b32 v6, 4, v2"); e("v_xor_b32 v7, v5, v6")
e(f"s_mul_i32 s38, {RB}, 192"); e(f"s_mul_i32 s39, {LW}, 48"); e("s_add_u32 s38, s38, s39"); e("s_lshl_b32 s38, s38, 10")
e(f"s_mul_i32 s39, {PAR}, 24576"); e("s_sub_u32 s40, 24576, s39"); e("s_add_u32 s39, s39, s38"); e("s_add_u32 s40, s40, s38")
e(f"s_lshl_b32 s41, {PAR}, 6")
e("v_lshlrev_b32 v8, 10, v4"); e("v_lshl_add_u32 v8, v7, 4, v8"); e("v_xor_b32 v8, s41, v8"); e("v_xor_b32 v9, 64, v8")
e("v_add_u32 v10, s39, v8"); e("v_add_u32 v11, s39, v9"); e("v_add_u32 v13, s40, v9"); e("v_add_u32 v14, s40, v8")
e("v_add_u32 v11, 8192, v11"); e("v_add_u32 v12, 16384, v10"); e("v_add_u32 v14, 8192, v14"); e("v_add_u32 v15, 16384, v13")
e(f"s_mul_i32 s50, {LW}, 6144"); e(f"s_mul_i32 s38, {PAR}, 3072"); e("s_sub_u32 s51, 3072, s38"); e("s_add_u32 s51, s51, s50"); e("s_add_u32 s50, s50, s38")
e(f"s_mov_b32 s{rX+2}, 0x200000"); e(f"s_mov_b32 s{rX+3}, 0x20000"); e(f"s_mov_b32 s{rW+3}, 0x20000")
XFIRST = opt("xfirst", 1)
def ld_x(st, i):
    e(f"s_add_u32 m0, {'s50' if i < 3 else 's51'}, {(st % 3) * SLOT + (i % 3) * 1024}")
    e(f"buffer_load_dwordx4 v{10+i}, {R(rX)}, s46 offen lds")
def ld_w(st, i):
    e(f"s_add_u32 m0, {'s50' if i < 3 else 's51'}, {(st % 3) * SLOT + WOFF + (i % 3) * 1024}")
    e(f"buffer_load_dwordx4 v{16+i}, {R(rW)}, s45 offen lds")
if XFIRST:
    e(f"s_lshl_b32 s46, {SXS}, 7")
    e("s_waitcnt lgkmcnt(0)")
    e(f"s_mov_b32 s{rX}, s{sX}"); e(f"s_mov_b32 s{rX+1}, s{sX+1}")
    stamp(1)
    for i in range(3): ld_x(0, i)
e(f"s_cmp_eq_u32 {TYP}, 0"); e("s_cbranch_scc1 L_ld_qkv")
e(f"s_and_b32 s38, {LW}, 1"); e("s_lshl_b32 s38, s38, 1"); e(f"s_add_u32 s39, s38, {PAR}"); e(f"s_sub_u32 s40, s38, {PAR}"); e("s_add_u32 s40, s40, 1")
e("s_mul_i32 s39, s39, %d" % (16 * 2752)); e("s_mul_i32 s40, s40, %d" % (16 * 2752))
e(f"s_mul_i32 s41, {CGW}, 12"); e("s_movk_i32 s42, 2752"); e(f"v_mov_b32 v23, {HUGE}")
for i in range(3):
    if i: e(f"v_add_u32 v6, {64*i}, v2")
    c = "v6" if i else "v2"
    e(f"v_mul_u32_u24 v7, 5462, {c}"); e("v_lshrrev_b32 v7, 16, v7")
    e(f"v_mad_i32_i24 v8, v7, -12, {c}")
    e("v_lshrrev_b32 v9, 2, v7"); e("v_and_b32 v9, 2, v9"); e("v_xad_u32 v8, v8, v9, s41")
    e("v_cmp_gt_u32 vcc, 172, v8")
    e("v_mul_u32_u24 v7, s42, v7"); e("v_lshl_add_u32 v7, v8, 4, v7")
    e("v_cndmask_b32 v7, v23, v7, vcc")
    e(f"v_add_u32 v{16+i}, s39, v7"); e(f"v_add_u32 v{19+i}, s40, v7")
e("s_mov_b32 s49, %d" % (64 * 2752))
if not XFIRST: e("s_waitcnt lgkmcnt(0)")
e(f"s_cmp_ge_u32 {LW}, 2"); e(f"s_cselect_b32 s{rW}, s{sW3}, s{sW1}"); e(f"s_cselect_b32 s{rW+1}, s{sW3+1}, s{sW1+1}"); e(f"s_mov_b32 s{rW+2}, {512 * 2752}")
e("s_branch L_ld_go")
e("L_ld_qkv:")
e("v_and_b32 v6, 1, v6"); e("v_lshlrev_b32 v6, 2, v6"); e("v_xor_b32 v6, v5, v6")
e("v_mul_u32_u24 v7, 3072, v4"); e("v_lshl_add_u32 v7, v6, 4, v7")
e(f"s_lshl_b32 s38, {PAR}, 5"); e("v_xor_b32 v7, s38, v7"); e("v_xor_b32 v8, 32, v7")
e(f"s_lshl_b32 s41, {GRP}, 7"); e(f"s_xor_b32 s44, s41, {QX << 7}")
e(f"s_mul_i32 s38, {LW}, 6"); e(f"s_mul_i32 s39, {PAR}, 3"); e("s_sub_u32 s40, 3, s39"); e("s_add_u32 s39, s39, s38"); e("s_add_u32 s40, s40, s38")
for i in range(6):
    e(f"s_add_u32 s42, {'s39' if i < 3 else 's40'}, {i % 3}")
    e("s_lshr_b32 s43, s42, 3"); e("s_cselect_b32 s38, s41, s44")
    e("s_lshl_b32 s43, s43, 10"); e("s_and_b32 s42, s42, 7"); e("s_mul_i32 s42, s42, %d" % (8 * 3072))
    e("s_add_u32 s42, s42, s43"); e("s_add_u32 s42, s42, s38")
    e(f"v_add_u32 v{16+i}, s42, v{7 + (i & 1)}")
e("s_mov_b32 s49, %d" % (64 * 3072))
if not XFIRST: e("s_waitcnt lgkmcnt(0)")
e(f"s_mov_b32 s{rW}, s{sWQKV}"); e(f"s_mov_b32 s{rW+1}, s{sWQKV+1}"); e(f"s_mov_b32 s{rW+2}, {512 * 3072}")
e("L_ld_go:")
if not XFIRST:
    e(f"s_mov_b32 s{rX}, s{sX}"); e(f"s_mov_b32 s{rX+1}, s{sX+1}")
    stamp(1)
def pf3():
    e("s_lshr_b32 s38, s2, 3"); e(f"s_lshl2_add_u32 s38, s38, {LW}"); e("s_mul_i32 s38, s38, 11264")
    e("s_mov_b32 exec_lo, 0x7ff"); e("s_mov_b32 exec_hi, 0")
    e(f"buffer_load_dword v31, v30, {R(rW2)}, s38 offen offset:384")
    e("s_mov_b64 exec, -1")
def pfwo():
    e("s_lshr_b32 s38, s2, 3"); e(f"s_lshl2_add_u32 s38, s38, {LW}"); e("s_lshl_b32 s38, s38, 12")
    e("s_mov_b32 exec_hi, 0")
    e(f"buffer_load_dword v31, v1, {R(rWO)}, s38 offen")
    e("s_mov_b64 exec, -1")
LOOK = opt("look", 3)
look = lambda st: opt("look7", 6) if st == 7 else LOOK
issued = []
def issue1(st, lo, hi):
    if lo >= hi or st > 7: return
    e(f"s_xor_b32 s46, {SXS}, {st}"); e("s_mul_i32 s45, s46, s49"); e("s_lshl_b32 s46, s46, 7")
    for i in range(lo, hi):
        if not (st == 0 and XFIRST and i < 3): ld_x(st, i)
        ld_w(st, i); issued.extend([st, st])
        if i == opt("pfi", 2) and st == PFS and st: pf3(); issued.append(-1)
        if i == 2 and st == WPF and st >= 3: pfwo(); issued.append(-1)
def wait_stage(st):
    last = max(k for k, v in enumerate(issued) if v == st)
    e(f"s_waitcnt vmcnt({len(issued) - 1 - last})")
issue1(0, 0, 6)
srd(e, rM, sGW, 1024)
e("v_lshlrev_b32 v4, 4, v2"); e(f"s_mov_b32 m0, {GATE_LDS}")
e(f"buffer_load_dwordx4 v4, {R(rM)}, 0 offen lds"); issued.append(0)
issue1(1, 0, LOOK)
STREAM = [0, 1, 2, 3, 4, 5, 6, 16, 17, 7, 18, 19, 20, 21, 12, 13, 14, 15, 8, 9, 10, 11]
POS = {t: n for n, t in enumerate(STREAM)}
def srot():
    AC = opt("ac", 1)
    e(f"s_and_b32 {SROT}, {CB}, {AC-1}"); e(f"s_mul_i32 {SROT}, {SROT}, {88//AC}"); e(f"s_lshr_b32 {SROT}, {SROT}, 2")
    e(f"s_and_b32 s38, {RB2}, {ROT2-1}"); e(f"s_mul_i32 s38, s38, {22//ROT2}"); e(f"s_add_u32 {SROT}, {SROT}, s38")
    if opt("xrot", 1):
        e(f"s_and_b32 s38, s2, {opt('xrot', 1)}"); e(f"s_mul_i32 s38, s38, {opt('xmul', 6)}"); e(f"s_add_u32 {SROT}, {SROT}, s38")
    for _ in range(2): e(f"s_cmp_ge_u32 {SROT}, 22"); e("s_cselect_b32 s38, 22, 0"); e(f"s_sub_u32 {SROT}, {SROT}, s38")
def wdma_addr(d):
    e("v_lshrrev_b32 v22, 3, v2"); e("v_and_b32 v23, 7, v2"); e("v_bfe_u32 v24, v2, 4, 1"); e("v_lshlrev_b32 v24, 2, v24"); e("v_xor_b32 v23, v23, v24")
    e(f"s_lshl_b32 s38, {CB}, 7")
    e(f"v_lshlrev_b32 v{d}, 10, v22"); e(f"v_lshl_add_u32 v{d}, v23, 4, v{d}"); e(f"v_add_u32 v{d}, s38, v{d}"); e(f"v_add_u32 v{d+1}, 8192, v{d}")
def p2setup_h():
    p2map(); p2tx()
    srd(e, rW2, sW2, 1376 * 1024); srd(e, rWO, sWO, 512 * 1024); srd(e, rWS, sWS, 0x10000000); srd(e, rACT, sWS, ACT_BYTES); srd(e, rDBG, sDBG, 256)
    srot()
    e("v_lshlrev_b32 v4, 4, v2"); e(f"v_add_u32 v5, {118*1024}, v4")
    wdma_addr(6)
    p2traddr(28)
    e(f"s_mul_i32 s52, {LW}, 12288")
    e("v_add_u32 v28, s52, v28"); e("v_xor_b32 v29, 64, v28"); e(f"v_add_u32 v8, {SLOT}, v28"); e(f"v_add_u32 v9, {SLOT}, v29")
    e(f"s_mul_i32 s53, {RB2}, {2 * 118 * 1024}")
    e("v_mov_b32 v22, 0"); e("v_lshlrev_b32 v30, 10, v2"); e("v_lshlrev_b32 v1, 7, v2")
def p2setup_b(lo, hi):
    for t in range(lo, hi):
        e(f"s_add_u32 s38, {SROT}, {POS[t]}"); e("s_cmp_ge_u32 s38, 22"); e("s_cselect_b32 s39, 22, 0"); e("s_sub_u32 s38, s38, s39"); e(f"s_lshl2_add_u32 s38, s38, {LW}")
        e("s_cmp_ge_u32 s38, 86"); e(f"s_cselect_b32 s39, {OOB}, s53"); e("s_lshl_b32 s38, s38, 10"); e(f"s_add_u32 s{AOFF(t)}, s38, s39")
def p2setup_c():
    e(f"s_add_u32 s54, s53, {86 * 1024}")
    for tp in range(4):
        e(f"s_xor_b32 s38, {TX}, {2*tp}"); e(f"s_lshl3_add_u32 s38, {LW}, s38"); e("s_lshl_b32 s38, s38, 10"); e(f"s_add_u32 s{QOFF(tp)}, s38, s54")
    e(f"s_add_u32 s38, s52, {SLOT + 8192}")
    partial_addr(vPA)
    e(f"v_mov_b32 v{vSY}, {SYNC_LDS}"); e(f"s_lshl2_add_u32 s38, {LW}, {SYNC_LDS}"); e(f"v_mov_b32 v{vSW}, s38"); e(f"v_mov_b32 v{vONE}, 1")
    e(f"s_add_u32 s38, s52, {2*SLOT}"); e("v_add_u32 v24, s38, v4")
    e(f"s_lshl_b32 s38, {LW}, 6"); e(f"s_add_u32 s38, s38, {KVS_LDS}"); e("v_lshrrev_b32 v25, 5, v2"); e("v_lshl_add_u32 v25, v25, 4, s38"); e("v_add_u32 v26, 32, v25")
    e("s_mov_b32 s38, 0xffff0000"); e("s_mov_b32 s39, 0xffff0000")
    e(f"v_cndmask_b32 v{vKA}, v24, v25, s[38:39]"); e(f"v_cndmask_b32 v{vKA+1}, v26, v24, s[38:39]")
    e("v_and_b32 v24, 31, v2"); e(f"v_lshlrev_b32 v{vLG}, 2, v24")
    e(f"s_lshl_b32 s44, {RB2}, 8"); e(f"s_add_u32 s44, s44, {G_OFF}")
AOFF = lambda t: 4 + t
QOFF = lambda tp: 80 + tp
vPA, vKA, vSY, vSW, vONE, vLG, vIR, vEI = 160, 164, 166, 167, 168, 169, 170, 172
def wtile(kind, t, ldsoff, thr=0):
    e(f"s_add_u32 m0, s52, {ldsoff}")
    if kind == "h": e(f"s_sub_u32 s38, s{AOFF(t)}, s53"); e("s_lshl_b32 s38, s38, 4"); r = rW2
    else: e(f"s_sub_u32 s38, s{QOFF(t//2)}, s54"); e(f"s_lshl4_add_u32 s38, s38, {16384 * (t & 1)}"); r = rWO
    if thr: e(f"s_waitcnt vmcnt({thr-1})")
    e(f"buffer_load_dwordx4 v6, {R(r)}, s38 offen lds")
    e(f"s_add_u32 m0, s52, {ldsoff + 1024}")
    if thr: e(f"s_waitcnt vmcnt({thr-1})")
    e(f"buffer_load_dwordx4 v7, {R(r)}, s38 offen lds")
BATCH = {"A": (2, [("h", t) for t in range(0, 6)]), "B": (0, [("h", t) for t in range(6, 12)]),
         "D": (1, [("o", 6), ("o", 7)] + [("h", t) for t in range(12, 16)]), "C": (2, [("h", t) for t in range(16, 22)]),
         "E": (0, [("o", t) for t in range(0, 6)])}
def batch(n, lo=0, hi=6, thr=0):
    slot, T = BATCH[n]
    for j, (kind, t) in enumerate(T):
        if lo <= j < hi: wtile(kind, t, slot * SLOT + j * 2048, thr)
WR = lambda t, ct: 32 + 8 * t + 4 * ct
def toregs(n):
    slot, T = BATCH[n]
    for j, (kind, t) in enumerate(T):
        for ct in range(2):
            for i in range(2):
                a, off = (8 + ct, (slot - 1) * SLOT) if slot else (28 + ct, 0)
                e(f"ds_read_b64_tr_b16 {vr(WR(t, ct) + 2*i, 2)}, v{a} offset:{off + j*2048 + i*512}")
p2setup_h()
wait_stage(0); stamp(2); e("s_barrier")
issue1(1, LOOK, 6); issue1(2, 0, LOOK)
LA = opt("la", 6)
for s in range(7):
    wait_stage(s + 1)
    if s == 6:
        e("v_cmp_ne_u32 vcc, 1, v23"); e("s_cmp_eq_u64 vcc, 0"); e("s_cbranch_scc1 L_clr_ok")
        poll(23, 22, rDBG, 0, 1)
        e("L_clr_ok:")
    stamp(3 + s)
    e("s_barrier")
    issue1(s + 2, look(s + 2), 6)
    if s == 4: e(f"buffer_load_dword v23, v22, {R(rDBG)}, 0 offen sc1"); issued.append(-1)
    issue1(s + 3, 0, look(s + 3))
    if s == opt("cpf2", 9):
        e("s_getpc_b64 s[38:39]"); e("L_pc2:")
        e("s_lshr_b32 s40, s2, 3"); e("s_and_b32 s40, s40, 3"); e(f"s_lshl2_add_u32 s40, s40, {LW}"); e("s_lshl_b32 s40, s40, 11")
        e("v_add_u32 v31, s40, v1"); e("v_min_u32 v31, L_end-L_pc2, v31")
        e("s_mov_b32 exec_lo, 0xffff"); e("s_mov_b32 exec_hi, 0")
        e("global_load_dword v0, v31, s[38:39]"); issued.append(-1)
        e("s_mov_b64 exec, -1")
    if s == 0: p2setup_b(0, 11)
    if s == 1: p2setup_c()
    if s == 2: p2setup_b(11, 22)
    if s == 5:
        if PFS == 8: pf3(); issued.append(-1)
        if WPF == 2: pfwo(); issued.append(-1)
        batch("A", 0, LA); issued.extend([-1] * (2 * LA))
e("L_ld_tail:")
batch("A", LA, 6)
if WPF == 1: pfwo()
batch("B")
e(f"s_waitcnt vmcnt({12 + (WPF == 1)})"); toregs("A"); e("s_waitcnt lgkmcnt(0)")
if opt("fine", 0) == 2: stamp(19)
batch("C", thr=opt("thrc", 0))
e("s_waitcnt vmcnt(12)")
if opt("fine", 0) == 2: stamp(20)
toregs("B")
ACC2 = lambda m, ct: 192 + 16 * (2 * m + ct)
WFB = lambda b, ct: 176 + 8 * b + 4 * ct
def ldsoff(kind, t):
    if kind == "h": return (8, (2 + t - 12) * 2048) if t < 16 else (8, SLOT + (t - 16) * 2048)
    return (28, t * 2048) if t < 6 else (8, (t - 6) * 2048)
def trread(kind, t, b):
    a, off = ldsoff(kind, t)
    return [f"ds_read_b64_tr_b16 {vr(WFB(b,ct)+2*i,2)}, v{a+ct} offset:{off + i*512}" for ct in range(2) for i in range(2)]
e("s_waitcnt vmcnt(8)")
for l in trread("h", 16, 0) + trread("h", 17, 1): e(l)
e(f"ds_write_b32 v{vSW}, v{vONE} offset:{SY_UF}")
if opt("fine", 0) == 2: stamp(21)
NE = opt("ne", 0)
DH = opt("dh", 0)
LATEB = [("E", j) for j in range(6)] + ([] if DH else [("D", j) for j in range(6)])
ldswait(vSY, SY_REL, 25, 4, "rel")
for n, j in LATEB[:NE]: batch(n, j, j + 1, THR)
if opt("qearly", 0): e(f"s_cmp_eq_u32 {TYP}, 0"); e("s_cbranch_scc1 L_sig_ok")
if NE < len(LATEB): ldswait(vSY, SY_SIG, 25, 5, "sig")
stamp(10)
for n, j in LATEB[NE:]: batch(n, j, j + 1)
if opt("fine", 0) == 3: stamp(19); e("s_waitcnt vmcnt(0)"); stamp(20)
if PRIO_H != PRIO_L: e(f"s_setprio {PRIO_H}")
e(f"s_mov_b32 s42, {CLAMP}"); e(f"s_mov_b32 s43, {NLOG2E}")
ldswait(vSY, SY_H, 25, 1, "h")
stamp(12)
DF = 2 * D; assert DF <= 8
TMP = lambda m: 32 + 16 * m
OF = lambda t, m: 64 + 8 * (t & 1) + 4 * m
vKV = 24
S = []
FR = []
fresh = set(range(4))
def mm(m, ct, W, B):
    P = 2 * m + ct; c = "0" if P in fresh else vr(ACC2(m, ct), 16); fresh.discard(P)
    return f"v_mfma_f32_32x32x16_bf16 {vr(ACC2(m,ct),16)}, {vr(W,4)}, {vr(B,4)}, {c}"
ACT = lambda f: 128 + 4 * (f % DF)
def job_h(t, m, W, ds=()):
    FR.append(("h", t, m)); f = len(FR) - 1
    for ct in range(2): S.append(dict(m=mm(m, ct, W(ct), ACT(f)), frag=f, last=(ct == 1), ds=list(ds) if ct == 0 else [], post=[]))
def job_n(t, m):
    FR.append(("q", t, m)); f = len(FR) - 1
    S.append(dict(m=f"v_mfma_f32_32x32x16_bf16 {vr(TMP(m),16)}, {vr(vKV,4)}, {vr(ACT(f),4)}, 0", frag=f, last=True, ds=[("kv", t)], post=[]))
def job_o(t, m):
    for ct in range(2): S.append(dict(m=mm(m, ct, WFB(1, ct), OF(t, m)), frag=None, last=False, ds=[("o", t)], post=[]))
def norm(t, m):
    nb, db = (0, 8) if t % 2 == 0 else (8, 0); T = TMP(m); r = 10 + m
    return ([f"v_fma_f32 v{r}, v{T+db}, v{vIR+m}, v{vEI+m}", f"v_rcp_f32 v{r}, v{r}"] + [f"v_mul_f32 v{T+nb+j}, v{T+nb+j}, v{r}" for j in range(8)]
            + [f"v_cvt_pk_bf16_f32 v{OF(t,m)+j}, v{T+nb+2*j}, v{T+nb+2*j+1}" for j in range(4)])
def put(k, L, tag=None, per=99):
    for i, l in enumerate(L): S[k + i // per]["post"].append((l, tag))
def spread(k, L, counts):
    L = list(L)
    for i, c in enumerate(counts):
        for _ in range(c):
            if L: S[k + i]["post"].append((L.pop(0), None))
    assert not L
kvread = lambda t: [f"ds_read_b128 {vr(vKV,4)}, v{vKA + (t & 1)} offset:{(t >> 1) * 1024}"]
for t in range(7):
    for m in range(2): job_h(t, m, lambda ct: WR(t, ct))
for b, t in enumerate((16, 17)):
    for m in range(2): job_h(t, m, lambda ct: WFB(b, ct))
kA = len(S)
RT = [7, 18, 19, 20, 21, 12, 13, 14, 15]
starts = []
for r in range(-1, 7):
    t = RT[r + 1]; W = (lambda ct: WR(t, ct)) if t < 12 else (lambda ct: WFB(0, ct)); ds = [("h", t)] if t >= 12 else []
    starts.append(len(S))
    job_n(r + 1, 0); job_h(t, 0, W, ds); job_n(r + 1, 1); job_h(t, 1, W)
    if r >= 0: job_o(r, 0); job_o(r, 1)
kZ = len(S)
for m in range(2):
    job_h(15, m, lambda ct: WFB(0, ct), [("h", 15)])
    for t in range(8, 10): job_h(t, m, lambda ct: WR(t, ct))
    job_o(7, m)
    for t in range(10, 12): job_h(t, m, lambda ct: WR(t, ct))
for r in range(-1, 7):
    k = starts[r + 1]
    if r >= 0: put(k, trread("o", r, 1), ("o", r), 2)
    if r + 2 < 8: put(k + 3, kvread(r + 2), ("kv", r + 2))
    if r >= 0:
        put(k + 5, trread("h", RT[r + 2], 0), ("h", RT[r + 2]), 2)
        if opt("bal", 1): spread(k + 3, norm(r + 1, 0), (2, 4, 2, 3, 3)); spread(k + 7, norm(r + 1, 1), (2, 4, 3, 1, 2, 2))
        else: spread(k + 3, norm(r + 1, 0), (2, 5, 3, 2, 2)); spread(k + 6, norm(r + 1, 1), (2, 3, 5, 4))
    else:
        put(k, trread("h", RT[1], 0), ("h", RT[1]), 2)
        spread(k + 3, norm(0, 0), (2, 6, 6)); spread(k + 6, norm(0, 1), (4, 5, 5))
put(kZ, trread("o", 7, 1), ("o", 7), 2)
put(kZ + 15, partial_writes(vPA, POFF_H, (0, 1)) + [f"s_mov_b32 exec_lo, 1\ns_mov_b32 exec_hi, 0\nds_add_u32 v{vSY}, v{vONE} offset:{SY_H0}\ns_mov_b64 exec, -1"], ("x", 0), 1)
def check(k, off, tag, val=1):
    put(k - 2, [f"ds_read_b32 v12, v{vSW} offset:{off}"], ("x", 0))
    put(k, [f"s_waitcnt lgkmcnt(0)\nv_readfirstlane_b32 s38, v12\ns_cmp_ge_u32 s38, {val}\ns_cbranch_scc0 L_{tag}_spin\nL_{tag}_back:"])
fq = min(f for f, x in enumerate(FR) if x[0] == "q")
kq = max(k for k, x in enumerate(S) if x["frag"] == fq - DF)
check(kq - 1, SY_Q, "q"); check(kA - 4, SY_KV, "kv")
if DH: check(starts[4] + 2, SY_KV, "d", 2)
put(kA - 3, kvread(0), ("kv", 0))
put(6, [f"v_med3_f32 v{vIR+m}, v{vIR+m}, s42, -s42" for m in range(2)] + [f"v_mul_f32 v{vIR+m}, s43, v{vIR+m}" for m in range(2)]
    + [f"v_exp_f32 v{vIR+m}, v{vIR+m}" for m in range(2)] + [f"v_mul_f32 v{vEI+m}, {EPS}, v{vIR+m}" for m in range(2)], None, 2)
def ld(f):
    kind, t, m = FR[f]
    if kind == "h": return f"buffer_load_dwordx4 {vr(ACT(f),4)}, v{4+m}, {R(rACT)}, s{AOFF(t)} offen sc1"
    return f"buffer_load_dwordx4 {vr(ACT(f),4)}, v{4+m}, {R(rACT)}, s{QOFF(t//2)} offen offset:{(t & 1) * 1024} sc1"
if opt("alh", 1): e(";@align on")
vm = []; dsq = []
for f in range(DF):
    e(ld(f)); vm.append(f)
    if f == 1:
        for m in range(2): e(f"buffer_load_dword v{vIR+m}, v{vLG}, {R(rWS)}, s44 offen offset:{128*m} sc1"); vm.append(-1)
vdone = -1; ddone = -1
for k, x in enumerate(S):
    w = []
    if x["frag"] is not None:
        p = vm.index(x["frag"])
        if p > vdone:
            if FR[x["frag"]][0] == "q" and opt("mergew", 1): p += 1
            w.append(f"vmcnt({len(vm) - 1 - p})"); vdone = p
    for tag in x["ds"]:
        p = max(i for i, g in enumerate(dsq) if g == tag)
        if p > ddone:
            if tag[0] == "kv": p = len(dsq) - 1
            w.append(f"lgkmcnt({len(dsq) - 1 - p})"); ddone = p
    if w: e("s_waitcnt " + " ".join(w))
    if k == 0: stamp(13)
    if opt("fine", 0) == 1 and k % 16 == 0 and k: stamp(20 + k // 16)
    e(x["m"])
    if x["last"] and x["frag"] + DF < len(FR): e(ld(x["frag"] + DF)); vm.append(x["frag"] + DF)
    for l, tag in x["post"]:
        e(l)
        if tag: dsq.append(tag)
stamp(14)
for l in partial_writes(vPA, POFF_H, (2, 3)): e(l)
e("s_waitcnt lgkmcnt(0)")
stamp(15)
e("s_barrier")
e("s_branch L_fin")
for tag, off, val in (("q", SY_Q, 1), ("kv", SY_KV, 1)) + ((("d", SY_KV, 2),) if DH else ()):
    e(f"L_{tag}_spin:"); ldswait(vSW, off, 12, val, tag); e(f"s_branch L_{tag}_back")
e("L_ld_idle:")
e("s_waitcnt lgkmcnt(0)")
p2setup_h(); p2setup_b(0, 22); p2setup_c()
if PFS: pf3()
if WPF >= 2: pfwo()
e("s_barrier")
batch("A", 0, LA)
poll(23, 22, rDBG, 0, 1)
e("s_barrier")
e("s_branch L_ld_tail")

XF = lambda b, rt: 16 + 48 * b + 4 * rt
WF = lambda b, c: 40 + 48 * b + 4 * c
ACC = lambda rt, c: 112 + 4 * (6 * rt + c)
RH, CH, MT0, SIG = "s48", "s49", "s50", "s51"
e("L_cons:")
e(f"v_mov_b32 v4, {SYNC_LDS}"); e("v_lshl_add_u32 v4, v2, 2, v4"); e("v_mov_b32 v6, 0")
e("s_mov_b32 exec_lo, 0xffff"); e("s_mov_b32 exec_hi, 0"); e("ds_write_b32 v4, v6"); e("s_mov_b64 exec, -1")
e(f"s_lshr_b32 {RH}, {WAVE}, 1"); e(f"s_and_b32 {CH}, {WAVE}, 1")
p2map()
e("v_and_b32 v8, 15, v2"); e("v_lshrrev_b32 v9, 4, v2")
e(f"s_mul_i32 s38, {RH}, {96 * 128}")
e("v_lshlrev_b32 v16, 7, v8"); e("v_add_u32 v16, s38, v16")
e("v_lshrrev_b32 v17, 1, v8"); e("v_xor_b32 v17, v17, v9")
e("v_lshl_add_u32 v10, v17, 4, v16"); e("v_xor_b32 v11, 64, v10")
e("v_bfe_u32 v17, v2, 2, 2"); e("v_and_b32 v18, 3, v2"); e("v_lshl_add_u32 v19, v9, 3, v17"); e("v_and_b32 v20, 1, v9")
for i in range(0, 144, 2): e(f"v_mov_b64 {vr(112+i, 2)}, 0")
e(f"s_mul_i32 s38, {RB}, 6"); e(f"s_mul_i32 s39, {RH}, 3"); e(f"s_add_u32 {MT0}, s38, s39")
e(f"v_mov_b32 v6, {SYNC_LDS}"); e("v_mov_b32 v7, 1"); e("v_lshlrev_b32 v14, 4, v2"); e("v_lshlrev_b32 v15, 2, v2")
e("s_waitcnt lgkmcnt(0)")
srd(e, rWS, sWS, 0x10000000); srd(e, rACT, sWS, ACT_BYTES); srd(e, rM, sWS, 0x10000000); srd(e, rOUT, sOUT, 0x200000)
e(f"s_lshl3_add_u32 s38, {RB2}, {CB}"); e("s_lshl_b32 s38, s38, 7"); e(f"s_add_u32 s38, s38, {CNT_OFF}"); e(f"s_add_u32 s10, s{sWS}, s38"); e(f"s_addc_u32 s11, s{sWS+1}, 0")
srd(e, rW2, sW2, 1376 * 1024); srd(e, rWO, sWO, 512 * 1024)
e("v_lshlrev_b32 v21, 4, v0"); e("v_lshlrev_b32 v0, 7, v2")
e(f"s_cmp_ge_u32 {LL}, 253"); e("s_cbranch_scc1 L_c_idle")
if PRIO_C: e(f"s_setprio {PRIO_C}")
e(f"s_cmp_eq_u32 {TYP}, 0"); e("s_cbranch_scc1 L_qkv")
e(f"s_mul_i32 {SIG}, {RB}, {24*32}"); e(f"s_add_u32 {SIG}, {SIG}, {CGW}"); e(f"s_lshl2_add_u32 {SIG}, {SIG}, {CNT_OFF}")
e(f"s_cmp_eq_u32 {RB}, 10"); e("s_mov_b32 s14, 0xffffff"); e("s_cselect_b32 s14, 0xffff, s14")
e(f"s_cmp_eq_u32 {CGW}, 14"); e(f"s_cselect_b32 s38, {CH}, 0"); e("s_cmp_eq_u32 s38, 1"); e("s_cbranch_scc1 L_gate")

def mainloop(typ, lastorder):
    def reads(b, ks):
        X = [f"ds_read_b128 {vr(XF(b, rt), 4)}, v{10+ks} offset:{rt*2048}" for rt in range(6)]
        if typ == "gate":
            return [f"ds_read_b128 {vr(WF(b, 0), 4)}, v12 offset:{ks*64}"] + X
        W = []
        for c in range(6):
            for i in range(2):
                if typ == "w13": a, off = 12 + ((c % 3) & 1), (32*ks + 4*i) * 192 + (c % 3) * 32 + (c // 3) * 12288
                else: a, off = 12 + (c & 1), (32*ks + 4*i) * 128 + (c // 2) * 8192
                W.append(f"ds_read_b64_tr_b16 {vr(WF(b, c) + 2*i, 2)}, v{a} offset:{off}")
        return W[:2] + X + W[2:]
    def mfmas(b, cols):
        M = []
        for n, c in enumerate(cols):
            for k in range(6):
                rt = k if n % 2 == 0 else 5 - k
                A, B = vr(WF(b, c), 4), vr(XF(b, rt), 4)
                if typ == "qkv" and c >= 2: A, B = B, A
                M.append(f"v_mfma_f32_16x16x32_bf16 {vr(ACC(rt, c), 4)}, {A}, {B}, {vr(ACC(rt, c), 4)}")
        return M
    cols = [0] if typ == "gate" else list(range(6))
    e("s_mov_b32 s52, 0"); e("s_mov_b32 s53, 0")
    if typ == "gate":
        e(f"s_lshl_b32 s46, {SXS}, 7"); e("v_add_u32 v12, s46, v13")
    e("s_barrier")
    stamp(2)
    for r in reads(0, 0): e(r)
    e(f"L_loop_{typ}:")
    for ks in range(2):
        Rd = reads(1 - ks, 1 - ks); M = mfmas(ks, cols); X = []
        e("s_waitcnt lgkmcnt(0)")
        if ks == 1:
            e(f"s_cbranch_scc1 L_last_{typ}")
            e("s_barrier")
            e("v_add_u32 v10, s54, v10")
            if typ == "gate": e("v_add_u32_e64 v12, s46, v13")
            else: e("v_add_u32_e64 v12, s54, v12"); Rd.insert(2, "v_add_u32_e64 v13, s54, v13")
            X = ["v_add_u32_e64 v11, s54, v11"]
        else:
            e("s_add_u32 s53, s53, 1")
            X = [f"s_add_u32 s52, s52, 1\ns_cmp_eq_u32 s52, 3", f"s_mov_b32 s54, {SLOT}", f"s_cselect_b32 s54, {-2*SLOT}, s54"]
            if typ == "gate": X.append(f"s_cselect_b32 s52, 0, s52\ns_xor_b32 s46, s53, {SXS}\ns_lshl_b32 s46, s46, 7\ns_cmp_eq_u32 s53, 8")
            else: X.append("s_cselect_b32 s52, 0, s52\ns_cmp_eq_u32 s53, 8")
        for k, m in enumerate(M):
            e(m)
            if Rd: e(Rd.pop(0))
            elif X: e(X.pop(0))
        for x in Rd + X: e(x)
    e(f"s_branch L_loop_{typ}")
    e(f"L_last_{typ}:")
    if RELE: e("s_mov_b32 exec_lo, 1"); e("s_mov_b32 exec_hi, 0"); e(f"ds_add_u32 v6, v7 offset:{SY_REL}"); e("s_mov_b64 exec, -1")
    for m in mfmas(1, lastorder): e(m)
    stamp(3)

pend = []
def flush():
    for l in pend: e(l)
    pend.clear()
def swap_store(O, soff, off=0):
    if opt("nost", 0):
        pend.extend([f"v_permlane16_swap_b32 v{O}, v{O+2}", f"v_permlane16_swap_b32 v{O+1}, v{O+3}"]); return
    pend.extend([f"v_permlane16_swap_b32 v{O}, v{O+2}", f"v_permlane16_swap_b32 v{O+1}, v{O+3}",
                 f"buffer_store_dwordx4 {vr(O,4)}, v14, {R(rACT)}, {soff} offen{' offset:%d' % off if off else ''} sc1"])

e(f"s_mul_i32 s38, {CH}, 96"); e(f"s_add_u32 s38, s38, {WOFF}")
e("v_mul_u32_u24 v19, 192, v19"); e("v_lshl_add_u32 v19, v18, 3, v19"); e("v_add_u32 v19, s38, v19")
e(f"s_cmp_eq_u32 {CH}, 0"); e("s_cselect_b32 s38, 32, -32")
e("v_mul_i32_i24 v20, s38, v20"); e("v_add_u32 v12, v19, v20"); e("v_sub_u32 v13, v19, v20")
e(f"s_mul_i32 s38, {CGW}, 6"); e(f"s_mul_i32 s39, {CH}, 3"); e("s_add_u32 s38, s38, s39")
e(f"s_mul_i32 s39, {MT0}, 118"); e("s_add_u32 s39, s39, s38"); e("s_lshl_b32 s4, s39, 10")
e("s_cmp_lt_u32 s38, 84"); e(f"s_cselect_b32 s7, s4, {HUGE}")
for pr in (1, 2): e(f"s_add_u32 s{4+pr}, s4, {pr*118*1024}"); e(f"s_add_u32 s{7+pr}, s7, {pr*118*1024}")
e(f"s_mov_b32 s44, {NLOG2E}"); e(f"s_mov_b32 s45, {NLOG2E}")
mainloop("w13", [0, 3, 1, 4, 2, 5])
n = 0
for u in range(3):
    for pr in range(3):
        T = 16 + 8 * (n & 1); O = 32 + 4 * (n & 3); n += 1
        G = [ACC(2*pr + j // 2, u) + 2 * (j & 1) for j in range(4)]; U = [g + 12 for g in G]
        for j in range(4): e(f"v_pk_mul_f32 {vr(T+2*j,2)}, {vr(G[j],2)}, s[44:45]")
        flush()
        for j in range(8): e(f"v_exp_f32 v{T+j}, v{T+j}")
        for j in range(4): e(f"v_pk_mul_f32 {vr(G[j],2)}, {vr(G[j],2)}, {vr(U[j],2)}")
        for j in range(4): e(f"v_pk_add_f32 {vr(T+2*j,2)}, {vr(T+2*j,2)}, 1.0 op_sel_hi:[1,0]")
        for j in range(8): e(f"v_rcp_f32 v{T+j}, v{T+j}")
        for j in range(4): e(f"v_pk_mul_f32 {vr(G[j],2)}, {vr(G[j],2)}, {vr(T+2*j,2)}")
        for j in range(4): e(f"v_cvt_pk_bf16_f32 v{O+j}, v{G[j]}, v{G[j]+1}")
        swap_store(O, f"s{(7 if u == 2 else 4) + pr}", 1024 * u)
flush()
e("s_branch L_signal")

e("L_gate:")
e(f"v_lshlrev_b32 v13, 4, v9"); e(f"v_add_u32 v13, {GATE_LDS}, v13")
mainloop("gate", [0])
e(f"s_add_u32 s40, s{sWS}, {G_OFF}"); e(f"s_addc_u32 s41, s{sWS+1}, 0"); e("s_mov_b32 s42, 8192"); e("s_mov_b32 s43, 0x20000")
e(f"s_lshl_b32 s39, {MT0}, 7")
e("s_mov_b32 exec_lo, 0xffff"); e("s_mov_b32 exec_hi, 0")
for rt in range(6):
    e(f"buffer_store_dword v{ACC(rt, 0)}, v15, s[40:43], s39 offen offset:{rt*64} sc1")
e("s_mov_b64 exec, -1")
e("s_branch L_signal")

e("L_c_idle:")
e("s_barrier")
e(f"s_cmp_eq_u32 {LL}, 253"); e("s_cbranch_scc0 L_c_idle2")
e(f"s_add_u32 s40, s{sWS}, {KV_OFF}"); e(f"s_addc_u32 s41, s{sWS+1}, 0"); e(f"s_mov_b32 s42, {CLR_BYTES}"); e("s_mov_b32 s43, 0x20000")
for i in range(17):
    e(f"s_mov_b32 s38, {4096*i}"); e(f"buffer_store_dwordx4 v[112:115], v21, s[40:43], s38 offen sc1")
srd(e, rM, sDBG, 256)
e("s_waitcnt vmcnt(0)")
e("v_mov_b32 v17, 1")
e("s_mov_b32 exec_lo, 1"); e("s_mov_b32 exec_hi, 0")
e(f"ds_add_rtn_u32 v18, v6, v17 offset:{SY_SIG}"); e("s_waitcnt lgkmcnt(0)"); e("v_readfirstlane_b32 s38, v18")
e("s_cmp_eq_u32 s38, 3"); e("s_cbranch_scc0 L_c_idle1")
e(f"buffer_store_dword v17, off, {R(rM)}, 0 sc1")
e("L_c_idle1:")
e("s_mov_b64 exec, -1")
e("L_c_idle2:")
e("s_waitcnt vmcnt(0)")
e("s_barrier")
e("v_mov_b32 v17, 5"); e(f"ds_write_b32 v6, v17 offset:{SY_SIG}"); e("v_mov_b32 v18, 4"); e(f"ds_write_b32 v6, v18 offset:{SY_REL}")
e(f"s_mov_b32 s46, {WAVE}"); e("v_mov_b32 v7, 0")
e("s_branch L_opart")

e("L_qkv:")
e("s_mov_b32 s14, 1")
QPACK = 1
if QPACK:
    e(f"s_and_b32 s38, {GRP}, 1"); e("s_mul_i32 s38, s38, 11"); e(f"s_add_u32 s38, s38, {RB}"); e(f"s_lshr_b32 {SIG}, {GRP}, 1"); e(f"s_lshl_b32 {SIG}, {SIG}, 5")
    e(f"s_add_u32 {SIG}, {SIG}, s38"); e(f"s_lshl2_add_u32 {SIG}, {SIG}, {QF}")
else:
    e(f"s_mul_i32 {SIG}, {GRP}, 11"); e(f"s_add_u32 {SIG}, {SIG}, {RB}"); e(f"s_lshl_b32 {SIG}, {SIG}, 7"); e(f"s_add_u32 {SIG}, {SIG}, {QF}")
e("v_and_b32 v17, 2, v17"); e("v_or_b32 v17, v17, v20"); e(f"s_lshl_b32 s38, {CH}, 1"); e("v_xor_b32 v17, s38, v17")
e("v_lshlrev_b32 v12, 7, v19"); e("v_lshl_add_u32 v12, v17, 5, v12"); e("v_lshl_add_u32 v12, v18, 3, v12"); e(f"v_add_u32 v12, {WOFF}, v12"); e("v_xor_b32 v13, 32, v12")
e(f"s_lshl_b32 s38, {WAVE}, 11"); e(f"s_add_u32 s38, s38, {KVS_LDS}")
e("v_lshrrev_b32 v17, 1, v9"); e("v_lshlrev_b32 v4, 10, v20"); e("v_lshl_add_u32 v4, v17, 9, v4")
e("v_bfe_u32 v17, v2, 2, 1"); e("v_bfe_u32 v19, v2, 3, 1"); e("v_lshl_or_b32 v18, v17, 3, v18"); e("v_lshl_or_b32 v18, v19, 2, v18")
e("v_lshl_add_u32 v4, v18, 4, v4"); e("v_add_u32 v4, s38, v4"); e("v_add_u32 v1, s38, v15")
e(f"s_lshl1_add_u32 s38, {GRP}, {CH}"); e("s_lshl_b32 s8, s38, 11"); e(f"s_add_u32 s8, s8, {KV_OFF}"); e("s_lshl_b32 s9, s38, 7"); e(f"s_add_u32 s9, s9, {Z_OFF}")
e(f"s_xor_b32 s38, s38, {2*QX}"); e("s_lshl1_add_u32 s38, s38, 86")
e(f"s_mul_i32 s39, {MT0}, 118"); e("s_add_u32 s39, s39, s38"); e("s_lshl_b32 s4, s39, 10")
for pr in (1, 2): e(f"s_add_u32 s{4+pr}, s4, {pr*118*1024}")
e(f"s_mov_b32 s44, {LOG2E}"); e(f"s_mov_b32 s45, {LOG2E}"); e(f"s_mov_b32 s42, {EPS}"); e(f"s_mov_b32 s43, {EPS}")
e("s_mov_b32 s40, 0xffff0000"); e("s_mov_b32 s41, 0xffff0000")
mainloop("qkv", [2, 3, 4, 5, 0, 1])
nphi = [0]
def phi(pr, c, O):
    T = 16 + 8 * (nphi[0] & 1); nphi[0] += 1
    G = [ACC(2*pr + j // 2, c) + 2 * (j & 1) for j in range(4)]
    for j in range(4): e(f"v_pk_mul_f32 {vr(T+2*j,2)}, {vr(G[j],2)}, s[44:45]")
    flush()
    for j in range(8): e(f"v_exp_f32 v{T+j}, v{T+j} clamp")
    for j in range(8): e(f"v_max_f32 v{G[j//2]+(j&1)}, 0, v{G[j//2]+(j&1)}")
    for j in range(4): e(f"v_pk_add_f32 {vr(G[j],2)}, {vr(G[j],2)}, {vr(T+2*j,2)}")
    for j in range(4): e(f"v_pk_add_f32 {vr(G[j],2)}, {vr(G[j],2)}, s[42:43]")
    for j in range(4): e(f"v_cvt_pk_bf16_f32 v{O+j}, v{G[j]}, v{G[j]+1}")
D2, D3, ONE = 48, 56, 64
for i in range(4): e(f"v_mov_b32 v{ONE+i}, 0x3f803f80")
for pr in range(3):
    if pr == 1:
        flush()
        e(f"s_cmp_ge_u32 {MT0}, 63"); e("s_cbranch_scc1 L_kv_done")
    for u in range(2):
        PK = 32 + 8 * u; VV = 36 + 8 * u
        phi(pr, 2 + u, PK)
        for j in range(4):
            g = ACC(2*pr + j // 2, 4 + u) + 2 * (j & 1)
            e(f"v_cvt_pk_bf16_f32 v{VV+j}, v{g}, v{g+1}")
        e(f"v_mfma_f32_16x16x32_bf16 {vr(D3+4*u,4)}, {vr(ONE,4)}, {vr(PK,4)}, {'0' if pr == 0 else vr(D3+4*u,4)}")
        pend.append(f"v_mfma_f32_16x16x32_bf16 {vr(D2+4*u,4)}, {vr(PK,4)}, {vr(VV,4)}, {'0' if pr == 0 else vr(D2+4*u,4)}")
flush()
e("L_kv_done:")
n = 0
for pr in range(3):
    for u in range(2):
        O = 32 + 4 * (n & 3)
        phi(pr, u, O)
        if n == 0:
            for uu in range(2): e(f"ds_write_b128 v4, {vr(D2+4*uu,4)} offset:{256*uu}")
            e(f"v_cndmask_b32 v{D3}, v{D3}, v{D3+4}, s[40:41]")
            e("s_mov_b32 exec_hi, 0")
            e(f"buffer_atomic_add_f32 v{D3}, v15, {R(rWS)}, s9 offen")
            e("s_mov_b64 exec, -1")
            for i in range(8): e(f"ds_read_b32 v{68+i}, v1 offset:{256*i}")
        swap_store(O, f"s{4+pr}", 1024 * u)
        if n == 0:
            pend.append("s_waitcnt lgkmcnt(0)")
            for i in range(8): pend.append(f"buffer_atomic_add_f32 v{68+i}, v15, {R(rWS)}, s8 offen offset:{256*i}")
        n += 1
flush()

e("L_signal:")
stamp(4)
e("v_mov_b32 v17, 1")
e("s_mov_b32 exec_lo, 1"); e("s_mov_b32 exec_hi, 0")
if not RELE: e(f"ds_add_u32 v6, v17 offset:{SY_REL}")
e("s_waitcnt vmcnt(0)")
stamp(5)
e(f"ds_add_rtn_u32 v18, v6, v17 offset:{SY_SIG}"); e("s_waitcnt lgkmcnt(0)"); e("v_readfirstlane_b32 s46, v18")
e("s_cmp_eq_u32 s46, 3"); e("s_cbranch_scc0 L_nosig")
e("s_mov_b32 exec_lo, s14")
e(f"buffer_store_dword v17, v0, {R(rM)}, {SIG} offen sc1")
e("s_mov_b32 exec_lo, 1")
e(f"ds_add_u32 v6, v17 offset:{SY_SIG}")
e("L_nosig:")
e("s_mov_b64 exec, -1")

e("L_opart:")
p2tx()
e(f"v_lshlrev_b32 v11, {2 if QPACK else 7}, v2"); e("v_lshlrev_b32 v10, 3, v2"); e("v_mov_b32 v17, 1")
e(f"s_mul_i32 s54, {WAVE}, {128 if QPACK else 22*128}"); e(f"s_add_u32 s54, s54, {QF}")
for tp in range(4):
    e(f"s_xor_b32 s38, {TX}, {2*tp}"); e(f"s_lshl3_add_u32 s38, {WAVE}, s38"); e(f"s_lshl_b32 s{4+tp}, s38, 10"); e(f"s_add_u32 s{4+tp}, s{4+tp}, {KV_OFF}")
e(f"s_lshl_b32 s12, {WAVE}, 9"); e(f"s_add_u32 s12, s12, {Z_OFF}")
e(f"s_lshl2_add_u32 s38, {WAVE}, {SYNC_LDS}"); e("v_mov_b32 v5, s38")
e(f"s_mul_i32 s38, {WAVE}, 12288"); e(f"s_add_u32 s38, s38, {2*SLOT}"); e("v_add_u32 v12, s38, v14")
e("v_lshrrev_b32 v20, 3, v2"); e("v_and_b32 v21, 7, v2")
e(f"v_xor_b32 v22, {TX}, v20"); e("v_lshrrev_b32 v23, 1, v22"); e("v_and_b32 v22, 1, v22")
e(f"s_lshl_b32 s38, {WAVE}, 6"); e(f"s_add_u32 s38, s38, {KVS_LDS}")
e("v_lshl_add_u32 v13, v23, 10, s38"); e("v_lshl_add_u32 v13, v22, 5, v13"); e("v_lshl_add_u32 v13, v21, 2, v13")
e("v_lshrrev_b32 v18, 1, v20"); e("v_and_b32 v19, 1, v20"); e("v_lshl_or_b32 v18, v19, 2, v18")
e("v_and_b32 v19, 3, v21"); e("v_lshlrev_b32 v19, 1, v19"); e("v_xor_b32 v18, v18, v19")
e("v_lshlrev_b32 v18, 4, v18"); e("v_lshl_add_u32 v18, v20, 7, v18")
e(f"s_lshl_b32 s38, {WAVE}, 10"); e("v_add_u32 v18, s38, v18")
e("v_lshrrev_b32 v19, 2, v21")
hb = [SLOT + 8192 + o for o in POFF_H]
for m in range(2):
    a = 26 + 2 * m
    e(f"v_mul_u32_u24 v{a}, {hb[2*m+1]-hb[2*m]}, v19"); e(f"v_add_u32 v{a}, v{a}, v18"); e(f"v_add_u32 v{a}, {hb[2*m]}, v{a}"); e(f"v_xor_b32 v{a+1}, 16, v{a}")
e("v_lshlrev_b32 v19, 2, v20")
e(f"s_lshl_b32 s44, {RB2}, 8"); e(f"s_lshl_b32 s38, {WAVE}, 5"); e("s_add_u32 s44, s44, s38"); e(f"s_add_u32 s44, s44, {G_OFF}")
e("v_lshlrev_b32 v16, 10, v20"); e("v_lshl_add_u32 v16, v21, 4, v16")
e(f"s_lshl_b32 s40, {RB2}, 16"); e(f"s_lshl_b32 s39, {WAVE}, 13"); e("s_add_u32 s40, s40, s39"); e(f"s_lshl_b32 s39, {CB}, 7"); e("s_add_u32 s40, s40, s39"); e("s_add_u32 s41, s40, 32768")
e(f"s_mov_b32 s42, {CLAMP}")
e(f"v_mul_u32_u24 v4, {118*1024}, v20"); e("v_lshl_add_u32 v4, v21, 7, v4")
e(f"s_mul_i32 s45, {RB2}, 236"); e(f"s_lshl3_add_u32 s38, {WAVE}, {CB}"); e("s_add_u32 s45, s45, s38"); e("s_add_u32 s45, s45, 86"); e("s_lshl_b32 s45, s45, 10")
if DH:
    srot(); wdma_addr(8)
    e(f"s_mul_i32 s52, {WAVE}, 12288")
    for j, (kind, t) in enumerate(BATCH["D"][1]):
        if kind == "h":
            e(f"s_add_u32 s38, {SROT}, {POS[t]}"); e("s_cmp_ge_u32 s38, 22"); e("s_cselect_b32 s39, 22, 0"); e("s_sub_u32 s38, s38, s39"); e(f"s_lshl2_add_u32 s38, s38, {WAVE}")
        else:
            e(f"s_xor_b32 s38, {TX}, {t}"); e(f"s_lshl3_add_u32 s38, {WAVE}, s38")
        e(f"s_lshl_b32 s{14+j}, s38, 14")
if PRIO_O or PRIO_C: e(f"s_setprio {PRIO_O}")
if opt("fine", 0) == 3: stamp(19); e("s_waitcnt vmcnt(0)"); stamp(20)
e("s_cmp_eq_u32 s46, 0"); e("s_cbranch_scc0 L_h2_other")
e(f"s_mov_b32 s47, {TMO}")
e("L_mb_loop:")
e("s_load_dwordx8 s[56:63], s[10:11], 0 glc"); e("s_load_dwordx8 s[84:91], s[10:11], 32 glc")
e("s_waitcnt lgkmcnt(0)")
e("s_mov_b32 s91, 1")
for a, b in ((56, 84), (58, 86), (60, 88), (62, 90), (56, 58), (60, 62), (56, 60)): e(f"s_and_b64 s[{a}:{a+1}], s[{a}:{a+1}], s[{b}:{b+1}]")
e("s_and_b32 s56, s56, s57"); e("s_cbranch_scc1 L_mb_done")
e("s_sub_u32 s47, s47, 1"); e("s_cmp_lg_u32 s47, 0"); e("s_cbranch_scc1 L_mb_loop")
e("L_mb_done:")
if opt("fine", 0) == 3: e(f"s_sub_u32 s47, {TMO}, s47"); e(f"v_writelane_b32 v{SV}, s47, 30")
e(f"ds_write_b32 v6, v17 offset:{SY_H}")
e("s_branch L_h2_ok")
e("L_h2_other:")
ldswait(6, SY_H, 25, 1, "h2")
if opt("fine", 0) == 3: stamp(21)
poll(23, 11, rWS, "s54", 22)
if opt("fine", 0) == 3: e(f"s_sub_u32 s47, {TMO}, s47"); e(f"v_writelane_b32 v{SV}, s47, 31")
e(f"ds_write_b32 v5, v17 offset:{SY_Q}")
stamp(6)
e(f"buffer_load_dwordx2 v[64:65], v10, {R(rWS)}, s12 offen sc1")
for tp in range(4):
    for p in range(2): e(f"buffer_load_dwordx4 {vr(128+8*tp+4*p,4)}, v14, {R(rWS)}, s{4+tp} offen offset:{p*1024} sc1")
for m in range(2): e(f"buffer_load_dword v{30+2*m}, v19, {R(rWS)}, s44 offen offset:{128*m} sc1")
QPF = opt("qpf", 0)
if QPF:
    e("s_mov_b32 exec_lo, 0xffff"); e("s_mov_b32 exec_hi, 0")
    e(f"buffer_load_dword v34, v4, {R(rACT)}, s45 offen sc1")
    e("s_mov_b64 exec, -1")
ldswait(6, SY_SIG, 25, 5, "sig2")
ldswait(5, SY_UF, 25, 1, "uf")
e(f"s_waitcnt vmcnt({10 + QPF})")
e("v_cvt_pk_bf16_f32 v64, v64, v65"); e("ds_write_b32 v13, v64")
for tp in range(4):
    e(f"s_waitcnt vmcnt({8 + QPF - 2*tp})")
    for j in range(4): e(f"v_cvt_pk_bf16_f32 v{128+8*tp+j}, v{128+8*tp+2*j}, v{128+8*tp+2*j+1}")
    e(f"ds_write_b128 v12, {vr(128+8*tp,4)} offset:{tp*1024}")
e(f"ds_write_b32 v5, v17 offset:{SY_KV}")
stamp(7)
e("s_setprio 0")
if DH:
    for j in (2, 3, 4, 0, 5, 1):
        if opt("dthr", 0): e(f"s_waitcnt vmcnt({opt('dthr', 0) - 1})")
        for i in range(2):
            e(f"s_add_u32 m0, s52, {SLOT + j*2048 + i*1024}")
            e(f"buffer_load_dwordx4 v{8+i}, {R(rWO if j < 2 else rW2)}, s{14+j} offen lds")
    e("v_mov_b32 v17, 2")
e("s_waitcnt vmcnt(0)")
if DH: e(f"ds_write_b32 v5, v17 offset:{SY_KV}")
for m in range(2):
    g = 30 + 2 * m
    e(f"v_med3_f32 v{g}, v{g}, s42, -s42"); e(f"v_mul_f32 v{g}, {LOG2E}, v{g}"); e(f"v_exp_f32 v{g}, v{g}"); e(f"v_add_f32 v{g}, 1.0, v{g}"); e(f"v_rcp_f32 v{g}, v{g}")
def fin(m, pk):
    B = 128
    for w in range(4):
        for s in range(2): e(f"ds_read_b128 {vr(B+8*w+4*s,4)}, v{26+2*m+s} offset:{w*12288}")
    e("s_waitcnt lgkmcnt(4)")
    if pk:
        for j in range(0, 8, 2): e(f"v_pk_add_f32 {vr(B+j,2)}, {vr(B+j,2)}, {vr(B+8+j,2)}")
        e("s_waitcnt lgkmcnt(0)")
        for j in range(0, 8, 2): e(f"v_pk_add_f32 {vr(B+16+j,2)}, {vr(B+16+j,2)}, {vr(B+24+j,2)}")
        for j in range(0, 8, 2): e(f"v_pk_add_f32 {vr(B+j,2)}, {vr(B+j,2)}, {vr(B+16+j,2)}")
        for j in range(0, 8, 2): e(f"v_pk_mul_f32 {vr(B+j,2)}, {vr(B+j,2)}, {vr(30+2*m,2)} op_sel_hi:[1,0]")
    else:
        for j in range(8): e(f"v_add_f32 v{B+j}, v{B+j}, v{B+8+j}")
        e("s_waitcnt lgkmcnt(0)")
        for j in range(8): e(f"v_add_f32 v{B+16+j}, v{B+16+j}, v{B+24+j}")
        for j in range(8): e(f"v_add_f32 v{B+j}, v{B+j}, v{B+16+j}")
        for j in range(8): e(f"v_mul_f32 v{B+j}, v{B+j}, v{30+2*m}")
    for j in range(0, 8, 2): e(f"v_cvt_pk_bf16_f32 v{72+4*m+j//2}, v{B+j}, v{B+1+j}")
    e(f"buffer_store_dwordx4 {vr(72+4*m,4)}, v16, {R(rOUT)}, s{40+m} offen {OUTC}")
ldswait(6, SY_H0, 25, 4, "h0")
stamp(14)
fin(0, False)
stamp(15)
e("s_barrier")
stamp(16)
fin(1, True)
e("L_fin:")
if STAMP:
    stamp(17); e("s_waitcnt vmcnt(0)"); stamp(18)
    e(f"v_writelane_b32 v{SV}, s92, 0"); e(f"v_writelane_b32 v{SV}, s94, 32")
    e(f"s_lshl_b32 s97, s2, 3"); e(f"s_add_u32 s97, s97, {WAVE}"); e("s_lshl_b32 s97, s97, 8"); e(f"s_add_u32 s97, s97, {ST_OFF}")
    e("v_lshlrev_b32 v1, 2, v2")
    e(f"buffer_store_dword v{SV}, v1, {R(rWS)}, s97 offen")
e("L_end:")
e("s_endpgm")
descriptors(e, [(K, 256, 256, 102)])
lines, n = hazard.fix(e.L, verbose=bool(opt("v", 0)))
lines, npad, nprom = align.run(lines)
lines2, n2 = hazard.fix(lines); assert n2 == 0
sys.stderr.write(f"inserted {n} hazard nops, {npad} pads, {nprom} promotions\n")
open(OPT.get("o", "v6.s"), "w").write("\n".join(lines) + "\n")
```

```python
import sys
from asmlib import *
import hazard
src, A, out = sys.argv[1], sys.argv[2], sys.argv[3]
K = 10
s = open(src).read()
first = s.split("\n")[0]
s = s.replace(first, first.replace("@launch ", f"@launch kernel={NAME}_kernel ") + "\n; @launch kernel=amp_kernel grid=(1,1,1) block=(64,1,1) lds=0")
e = Asm()
kernel_begin(e, "amp_kernel")
e("s_memrealtime s[8:9]")
e("s_load_dwordx2 s[4:5], s[0:1], 80")
e("s_cmp_ge_u32 s2, 1"); e("s_cbranch_scc1 A_end")
e("s_waitcnt lgkmcnt(0)")
srd(e, 12, 4, 0x10000000)
e("v_lshlrev_b32 v1, 11, v0"); e("s_mov_b32 s16, 0x800000")
for i in range(4):
    e(f"buffer_load_dword v{4+i}, v1, s[12:15], s16 offen offset:128")
    if A != "none": e(f"buffer_load_dword v{8+i}, v1, s[12:15], s16 offen offset:{128 + 4*int(A)}")
    e("s_add_u32 s16, s16, 131072")
e("s_waitcnt vmcnt(0)")
for i in range(8): e(f"v_sub_u32 v{4+i}, s8, v{4+i}")
e("v_max_u32 v4, v4, v5"); e("v_max_u32 v6, v6, v7"); e("v_max_u32 v4, v4, v6")
e("v_min_u32 v8, v8, v9"); e("v_min_u32 v10, v10, v11"); e("v_min_u32 v8, v8, v10")
e("s_mov_b32 s20, 0"); e("s_mov_b32 s21, -1")
for l in range(64):
    e(f"v_readlane_b32 s22, v4, {l}"); e(f"v_readlane_b32 s23, v8, {l}"); e("s_max_u32 s20, s20, s22"); e("s_min_u32 s21, s21, s23")
if A == "none": e("s_mov_b32 s10, 0")
else: e("s_sub_u32 s10, s20, s21")
e("s_min_u32 s10, s10, 20000"); e(f"s_mul_i32 s10, s10, {K}"); e("s_add_u32 s10, s10, 500")
e("A_loop:")
e("s_memrealtime s[12:13]"); e("s_waitcnt lgkmcnt(0)"); e("s_sub_u32 s12, s12, s8"); e("s_cmp_lt_u32 s12, s10"); e("s_cbranch_scc1 A_loop")
e("A_end:")
e("s_endpgm")
d = Asm(); descriptors(d, [("amp_kernel", 16, 16, 32)])
i = s.index('.section .rodata')
s = s[:i] + "\n".join(hazard.fix(e.L)[0]) + "\n" + s[i:] + "\n".join(d.L[1:]) + "\n"
open(out, "w").write(s)
```
